```python
import torch

def _softmax(x, axis=-1):
    return torch.softmax(x, dim=axis)
def _gelu(x):
    return torch.nn.functional.gelu(x, approximate="tanh")
def _silu(x):
    return torch.nn.functional.silu(x)
def _sigmoid(x):
    return torch.sigmoid(x)
def _layernorm(x, axis=-1, eps=1e-5):
    m = x.mean(dim=axis, keepdim=True)
    v = x.var(dim=axis, keepdim=True, unbiased=False)
    return (x - m) / torch.sqrt(v + eps)
def _scatter_add(tgt, idx, src, axis=0):
    return tgt.clone().index_add_(axis, idx, src)
def _segment_sum(src, seg, n):
    out = torch.zeros((n,) + src.shape[1:], dtype=src.dtype)
    return out.index_add_(0, seg, src)
def _pad(x, pw):
    flat = tuple(v for pair in reversed(pw) for v in pair)
    return torch.nn.functional.pad(x, flat)

kernel_name = 'gated_mix__ssm_conv_s4d__ssm_conv_s4d__prompt'

def setup_inputs():

    _w = (lambda a: (lambda t: t.to(torch.bfloat16) if t.is_floating_point() else t)(torch.as_tensor(a)))
    def _A_setup():
        Bsz, L, D, N = 1, 2048, 512, 128
        return {
            "u": _w((lambda *s: torch.randn(*s, dtype=torch.bfloat16) * 0.05)(Bsz, L, D)),
            "log_A_real": _w((lambda *s: torch.randn(*s, dtype=torch.bfloat16) * 6.4)(D, N) * 0.5),
            "A_imag": _w((lambda *s: torch.randn(*s, dtype=torch.bfloat16) * 0.05)(D, N) * 3.14),
            "C_real": _w((lambda *s: torch.randn(*s, dtype=torch.bfloat16) * 0.05)(D, N) / N ** 0.5),
            "C_imag": _w((lambda *s: torch.randn(*s, dtype=torch.bfloat16) * 0.05)(D, N) / N ** 0.5),
            "log_dt": _w((lambda *s: torch.randn(*s, dtype=torch.bfloat16) * 0.05)(D) * 0.5 - 4.0),
            "D_skip": _w((lambda *s: torch.randn(*s, dtype=torch.bfloat16) * 0.05)(D)),
        }
    _A_in = _A_setup()

    def _B_setup():
        Bsz, L, D, N = 1, 2048, 512, 128
        return {
            "u": _w((lambda *s: torch.randn(*s, dtype=torch.bfloat16) * 0.05)(Bsz, L, D)),
            "log_A_real": _w((lambda *s: torch.randn(*s, dtype=torch.bfloat16) * 6.4)(D, N) * 0.5),
            "A_imag": _w((lambda *s: torch.randn(*s, dtype=torch.bfloat16) * 0.05)(D, N) * 3.14),
            "C_real": _w((lambda *s: torch.randn(*s, dtype=torch.bfloat16) * 0.05)(D, N) / N ** 0.5),
            "C_imag": _w((lambda *s: torch.randn(*s, dtype=torch.bfloat16) * 0.05)(D, N) / N ** 0.5),
            "log_dt": _w((lambda *s: torch.randn(*s, dtype=torch.bfloat16) * 0.05)(D) * 0.5 - 4.0),
            "D_skip": _w((lambda *s: torch.randn(*s, dtype=torch.bfloat16) * 0.05)(D)),
        }
    _B_in = _B_setup()

    return {
        "A_u": _A_in["u"],
        "A_log_A_real": _A_in["log_A_real"],
        "A_A_imag": _A_in["A_imag"],
        "A_C_real": _A_in["C_real"],
        "A_C_imag": _A_in["C_imag"],
        "A_log_dt": _A_in["log_dt"],
        "A_D_skip": _A_in["D_skip"],
        "B_u": _B_in["u"],
        "B_log_A_real": _B_in["log_A_real"],
        "B_A_imag": _B_in["A_imag"],
        "B_C_real": _B_in["C_real"],
        "B_C_imag": _B_in["C_imag"],
        "B_log_dt": _B_in["log_dt"],
        "B_D_skip": _B_in["D_skip"],
        "gate_w": _w((lambda *s: torch.randn(*s, dtype=torch.bfloat16) * 0.05)(512) * 16.0),
    }

def reference(A_u, A_log_A_real, A_A_imag, A_C_real, A_C_imag, A_log_dt, A_D_skip, B_u, B_log_A_real, B_A_imag, B_C_real, B_C_imag, B_log_dt, B_D_skip, gate_w):
    def _A_ref(u, log_A_real, A_imag, C_real, C_imag, log_dt, D_skip):
        L = u.shape[1]
        dt = torch.exp(log_dt)
        A = -torch.exp(log_A_real) + 1j * A_imag
        C = (C_real + 1j * C_imag) * dt[:, None]
        pos = (lambda x, dt: x.to(dt))(torch.arange(L), log_dt.dtype)
        P = torch.exp((A * dt[:, None])[:, :, None] * pos[None, None, :])
        K = 2.0 * torch.einsum("dn,dnl->dl", C, P).real
        L2 = 2 * L
        u_t = (lambda x, *d: x.permute(*d))(u, 0, 2, 1)
        Kf = (lambda x, *a, **k: torch.fft.rfft(x.float(), *a, **k))(K, L2)
        Uf = (lambda x, *a, **k: torch.fft.rfft(x.float(), *a, **k))(u_t, L2)
        y = (lambda x, *a, **k: torch.fft.irfft(x, *a, **k).to(torch.bfloat16))(Uf * Kf[None, :, :], L2)[:, :, :L]
        y = (lambda x, *d: x.permute(*d))(y, 0, 2, 1)
        return y + u * D_skip[None, None, :]

    def _B_ref(u, log_A_real, A_imag, C_real, C_imag, log_dt, D_skip):
        L = u.shape[1]
        dt = torch.exp(log_dt)
        A = -torch.exp(log_A_real) + 1j * A_imag
        C = (C_real + 1j * C_imag) * dt[:, None]
        pos = (lambda x, dt: x.to(dt))(torch.arange(L), log_dt.dtype)
        P = torch.exp((A * dt[:, None])[:, :, None] * pos[None, None, :])
        K = 2.0 * torch.einsum("dn,dnl->dl", C, P).real
        L2 = 2 * L
        u_t = (lambda x, *d: x.permute(*d))(u, 0, 2, 1)
        Kf = (lambda x, *a, **k: torch.fft.rfft(x.float(), *a, **k))(K, L2)
        Uf = (lambda x, *a, **k: torch.fft.rfft(x.float(), *a, **k))(u_t, L2)
        y = (lambda x, *a, **k: torch.fft.irfft(x, *a, **k).to(torch.bfloat16))(Uf * Kf[None, :, :], L2)[:, :, :L]
        y = (lambda x, *d: x.permute(*d))(y, 0, 2, 1)
        return y + u * D_skip[None, None, :]

    x = A_u
    g = _sigmoid((x * gate_w).sum(-1, keepdims=True))
    a = _A_ref(x, A_log_A_real, A_A_imag, A_C_real, A_C_imag, A_log_dt, A_D_skip)
    b = _B_ref(x, B_log_A_real, B_A_imag, B_C_real, B_C_imag, B_log_dt, B_D_skip)
    return g * a + (1 - g) * b
```

```python
import re, subprocess, os

REG_RE = re.compile(r'(?<![\w.])(-|\|)?([vas])(?:(\d+)|\[(\d+):(\d+)\])(?![\w])')
TRANS = ('v_exp_f32', 'v_log_f32', 'v_rcp_f32', 'v_rsq_f32', 'v_sqrt_f32', 'v_sin_f32', 'v_cos_f32')

def regs_of(op):
    op = op.strip()
    out = set()
    if op in ('vcc',): return {('s', 'vcc')}
    if op in ('exec',): return {('s', 'exec')}
    if op in ('m0',): return {('s', 'm0')}
    if op in ('vcc_lo', 'vcc_hi'): return {('s', 'vcc')}
    m = REG_RE.search(op)
    if m:
        k = m.group(2)
        if m.group(3) is not None: out.add((k, int(m.group(3))))
        else:
            for r in range(int(m.group(4)), int(m.group(5)) + 1): out.add((k, r))
    return out

class Ins:
    def __init__(self, text, tag=None):
        self.text = text.strip(); self.tag = tag
        self.label = self.text.endswith(':')
        self.directive = self.text.startswith('.') or self.text.startswith(';') or self.text == ''
        self.size = 0
        self.rd = set(); self.wr = set()
        self.mn = ''
        if self.label or self.directive: return
        t = self.text.split(';')[0].strip()
        p = t.split(None, 1); mn = p[0]; rest = p[1] if len(p) > 1 else ''
        self.mn = mn
        base = re.sub(r'_(e32|e64|dpp|sdwa)$', '', mn)
        self.base = base
        ops = []; depth = 0; cur = ''
        for ch in rest:
            if ch in '[(': depth += 1
            if ch in '])': depth -= 1
            if ch == ',' and depth == 0: ops.append(cur.strip()); cur = ''
            else: cur += ch
        if cur.strip(): ops.append(cur.strip())
        mods = ''
        if ops:
            q = ops[-1].split(None, 1); ops[-1] = q[0]; mods = q[1] if len(q) > 1 else ''
        self.ops = ops; self.mods = mods
        R = [regs_of(o) for o in ops]
        allr = lambda xs: set().union(*xs) if xs else set()
        self.mfma = base.startswith('v_mfma')
        self.ds = base.startswith('ds_')
        self.vmem = base.startswith('buffer_') or base.startswith('global_')
        self.smem = base.startswith('s_load') or base.startswith('s_memtime') or base.startswith('s_memrealtime') or base.startswith('s_atomic')
        self.valu = base.startswith('v_') and not self.mfma
        self.salu = base.startswith('s_') and not self.smem
        self.dpp = '_dpp' in mn or 'row_' in mods or 'wave_' in mods or 'quad_perm' in mods
        self.trans = base in TRANS
        self.dot = base.startswith('v_dot')
        self.load_dst = set()
        if mn == 'PUBLISH': return
        if self.mfma:
            self.wr = R[0]; self.rd = allr(R[1:]); self.A = R[1]; self.B = R[2]; self.C = R[3]
            self.passes = 8 if '32x32' in base else 4
        elif self.ds:
            if base.startswith('ds_read') or base.startswith('ds_bpermute') or base.startswith('ds_swizzle'):
                self.wr = R[0]; self.rd = allr(R[1:]); self.load_dst = R[0]
            else: self.rd = allr(R)
        elif self.vmem:
            if '_load' in base and ' lds' not in ' ' + mods:
                self.wr = R[0]; self.rd = allr(R[1:]); self.load_dst = R[0]
            elif '_atomic' in base and 'sc0' in mods.split():
                self.wr = R[0]; self.rd = allr(R); self.load_dst = R[0]
            else: self.rd = allr(R)
            self.wide_store = '_store' in base and ('x3' in base or 'x4' in base)
            if '_store' in base:
                self.store_data = R[0] if base.startswith('buffer_') else R[1]
        elif self.smem:
            self.wr = R[0]; self.rd = allr(R[1:]); self.load_dst = R[0]
            if base.startswith('s_atomic'): self.rd |= R[0]
        elif self.valu:
            self.wr = set(R[0]); self.rd = allr(R[1:])
            if base in ('v_add_co_u32', 'v_addc_co_u32', 'v_sub_co_u32', 'v_subb_co_u32'):
                self.wr |= R[1]; self.rd = allr(R[2:])
            if base.startswith('v_fmac') or base.startswith('v_dot2c') or base == 'v_writelane_b32' or (self.dpp and ('bank_mask:0xf' not in mods or 'row_mask:0xf' not in mods or 'bound_ctrl' not in mods)):
                self.rd |= R[0]
            if base.startswith('v_permlane') and 'swap' in base:
                self.wr |= R[1]; self.rd |= R[0]
            if base == 'v_cndmask_b32' and len(ops) == 3: self.rd.add(('s', 'vcc'))
            self.rd.add(('s', 'exec'))
        elif self.salu:
            if base.startswith('s_cmp') or base.startswith('s_cbranch') or base in ('s_branch', 's_barrier', 's_waitcnt', 's_nop', 's_sleep', 's_endpgm', 's_setprio', 's_bitcmp0_b32', 's_bitcmp1_b32'):
                self.rd = allr(R)
                if 'vcc' in base: self.rd.add(('s', 'vcc'))
                if 'exec' in base: self.rd.add(('s', 'exec'))
            else:
                self.wr = set(R[0]) if R else set(); self.rd = allr(R[1:])
                if 'saveexec' in base: self.wr.add(('s', 'exec')); self.rd.add(('s', 'exec'))
    def states(self):
        if self.label or self.directive: return 0
        if self.mn == 's_nop': return int(self.ops[0], 0) + 1
        return 1

def parse_wait(text):
    v = re.search(r'vmcnt\((\d+)\)', text); l = re.search(r'lgkmcnt\((\d+)\)', text)
    return (int(v.group(1)) if v else None, int(l.group(1)) if l else None)

def auto_wait(ins):
    out = []; vq = []; lq = []
    for x in ins:
        if x.label or x.directive: out.append(x); continue
        if x.mn == 'PUBLISH':
            last = None
            for i, e in enumerate(lq):
                if e[2]: last = i
            if last is not None:
                nl = 0 if any(e[1] for e in lq) else min(len(lq) - 1 - last, 15)
                lq = lq[len(lq) - nl:] if nl else []
                out.append(Ins(f's_waitcnt lgkmcnt({nl})', tag='auto'))
            continue
        if x.mn == 's_waitcnt':
            v, l = parse_wait(x.text)
            if v is not None: vq = vq[len(vq) - v:] if v < len(vq) else vq
            if v == 0: vq = []
            if l is not None:
                if l == 0: lq = []
                elif not any(e[1] for e in lq) and l < len(lq): lq = lq[len(lq) - l:]
            out.append(x); continue
        touch = x.rd | x.wr
        nv = None; nl = None
        for i, (d, _) in enumerate(vq):
            if d & touch: nv = len(vq) - 1 - i
        for i, (d, s, _w) in enumerate(lq):
            if d & touch: nl = len(lq) - 1 - i
        if nl is not None and any(e[1] for e in lq): nl = 0
        if nv is not None or nl is not None:
            parts = []
            if nv is not None:
                nv = min(nv, 63); parts.append(f'vmcnt({nv})'); vq = vq[len(vq) - nv:] if nv else []
            if nl is not None:
                nl = min(nl, 15); parts.append(f'lgkmcnt({nl})'); lq = lq[len(lq) - nl:] if nl else []
            out.append(Ins('s_waitcnt ' + ' '.join(parts), tag='auto'))
        if x.vmem: vq.append((x.load_dst, False))
        elif x.ds: lq.append((x.load_dst, False, not x.load_dst))
        elif x.smem: lq.append((x.load_dst, True, False))
        out.append(x)
    return out

def is_v(rs): return {r for r in rs if r[0] in 'va'}
def is_s(rs): return {r for r in rs if r[0] == 's'}

def need(p, c):
    n = 0
    pw = is_v(p.wr);
    if p.valu:
        if c.mfma and pw & c.rd: n = max(n, 2)
        if c.valu and c.dpp and pw & c.rd: n = max(n, 2)
        if c.valu and c.base in ('v_readlane_b32', 'v_readfirstlane_b32') and pw & c.rd: n = max(n, 1)
        if c.valu and c.base.startswith('v_permlane') and pw & c.rd: n = max(n, 2)
        if p.trans and pw & c.rd and not (c.valu and c.trans): n = max(n, 1)
        if p.dot and pw & (c.rd | c.wr):
            if c.valu and c.base == p.base and not (pw & (regs_of(c.ops[1]) | regs_of(c.ops[2]))): pass
            else: n = max(n, 3)
        sw = is_s(p.wr)
        if sw:
            if c.valu and sw & c.rd - {('s', 'exec')}: n = max(n, 4 if c.base in ('v_readlane_b32', 'v_writelane_b32') else 2)
            if c.vmem and sw & c.rd: n = max(n, 5)
            if (c.salu or c.smem) and sw & c.rd: n = max(n, 4)
    if p.mfma:
        big = 12 if p.passes == 8 else 8
        if c.mfma:
            if pw & (c.A | c.B): n = max(n, big)
            if pw & c.C and not (pw == c.C and c.passes == p.passes): n = max(n, big - 2)
            if pw & c.wr and pw != c.C: n = max(n, big)
        elif (c.valu or c.ds or c.vmem) and pw & (c.rd | c.wr): n = max(n, big)
        if c.valu and is_v(p.C) & c.wr: n = max(n, 7 if p.passes == 8 else 3)
    if p.vmem and getattr(p, 'wide_store', False) and p.store_data & c.wr: n = max(n, 2)
    if p.salu and ('s', 'm0') in p.wr and (c.ds or c.vmem): n = max(n, 1)
    return n

def hazards(ins):
    out = []
    for x in ins:
        if x.label or x.directive: out.append(x); continue
        req = 0; dist = 0
        for p in reversed(out):
            if p.label or p.directive: continue
            if dist >= 20: break
            n = need(p, x)
            if n - dist > req: req = n - dist
            dist += p.states()
        while req > 0:
            k = min(req, 16); out.append(Ins(f's_nop {k-1}', tag='haz')); req -= k
        out.append(x)
    return out

def sizes(ins):
    real = [x for x in ins if not (x.label or x.directive)]
    src = []
    for x in real:
        t = x.text.split(';')[0]
        if x.mn.startswith('s_cbranch') or x.mn == 's_branch': t = x.mn + ' 0'
        t = re.sub(r'\bCODE_BYTES\b', '0x12345', t)
        src.append(t)
    open('_sz.s', 'w').write('\n'.join(src) + '\n')
    r = subprocess.run(['llvm-mc', '-triple=amdgcn-amd-amdhsa', '-mcpu=gfx950', '-show-encoding', '_sz.s'], capture_output=True, text=True)
    if r.returncode != 0:
        print(r.stderr[:3000]); raise SystemExit('assembly error')
    enc = [l for l in r.stdout.splitlines() if 'encoding:' in l]
    assert len(enc) == len(real), (len(enc), len(real))
    for x, l in zip(real, enc):
        x.size = l.split('encoding:')[1].count('0x'); x.canon = l.split(';')[0].strip()

def promotable(x):
    return x.valu and x.size == 4 and x.canon.split()[0].endswith('_e32') and not x.base.startswith('v_permlane') and not x.mn.endswith('_e32')

def align8(ins):
    sizes(ins)
    out = []; addr = 0; last4 = None; mis = 0
    real = [x for x in ins if not (x.label or x.directive)]
    pos = {id(x): i for i, x in enumerate(real)}
    for x in ins:
        if x.directive or x.label:
            out.append(x); continue
        if x.size == 8 and addr % 8 == 4:
            i = pos[id(x)]; run = 0; nm = 0
            while i + run < len(real) and real[i + run].size == 8:
                nm += real[i + run].mfma; run += 1
            if last4 is not None:
                last4.text = last4.text.replace(last4.mn, last4.base + '_e64', 1); last4.mn = last4.base + '_e64'; last4.size = 8
                addr += 4; last4 = None
            elif run >= 5 and nm * 4 < run:
                n = Ins('s_nop 0', tag='align'); n.size = 4; out.append(n); addr += 4
            else: mis += 1
        if x.size == 4: last4 = x if promotable(x) else last4
        else: last4 = None
        addr += x.size; out.append(x)
    ins[:] = out
    return mis

def finalize(ins, verbose=True):
    ins = auto_wait(ins)
    ins = hazards(ins)
    mis = align8(ins)
    n = sum(1 for x in ins if not (x.label or x.directive))
    if verbose:
        print('instructions', n, 'bytes', sum(x.size for x in ins), 'haz nops', sum(1 for x in ins if x.tag == 'haz'), 'auto waits', sum(1 for x in ins if x.tag == 'auto'), 'misaligned', mis)
    return ins
def emit(ins):
    return '\n'.join((x.text if (x.label or x.directive) else '    ' + x.text) for x in ins) + '\n'
```

```python
import sys, argparse
from asmlib import *
ap = argparse.ArgumentParser()
ap.add_argument('-o', default='gated_mix__ssm_conv_s4d__ssm_conv_s4d__prompt.s')
ap.add_argument('--diag', type=int, default=0)
ap.add_argument('--posg', type=int, default=30)
ap.add_argument('--la', type=int, default=6)
ap.add_argument('--nocodepf', type=int, default=0)
ap.add_argument('--n0', type=int, default=5)
ap.add_argument('--pace', default='8,26,44')
ap.add_argument('--dumpk', type=int, default=0)
A = ap.parse_args()

NAME = 'gated_mix__ssm_conv_s4d__ssm_conv_s4d__prompt_kernel'
STG = 31232; ROW = 528; UB = 4 * STG; UCH = 8320; UO = 4160; LDS = UB + 2 * UCH
EXO = 4352
L = []
def e(t):
    for line in t.strip().split('\n'):
        line = line.strip()
        if line: L.append(Ins(line))
def vr(b, n): return f'v[{b}:{b+n-1}]' if n > 1 else f'v{b}'
def ar(b, n): return f'a[{b}:{b+n-1}]'
stamp_n = [0]
def stamp(dst=None):
    if not A.diag: return None
    k = 64 + 2 * stamp_n[0]; stamp_n[0] += 1
    t = f's_memtime s[{k}:{k+1}]'
    if dst is None: e(t)
    else: dst.append(t)

vTID, vLN = 0, 1
vT = [2, 3, 4, 5, 6, 7, 8, 9]
vSW, vXA, vYA, vKW, vKW2, vKW3, vUS, vAA, vBA, vEW, vER0, vER1, vST, vGL, vUL, vDK = range(10, 26)
vSG = 26
vU = 28
vG = 36
vGX, vGWt = 52, 60
vPF = 68
vCP = 76
vLA, vAI, vCR, vCI = 77, 78, 79, 80
vGA = 81
vKB = 84
sW, sTAG, sD, sLDT, sE = 3, 48, 49, 50, 51
sODD = 52
sCNT = 54
sOFF = lambda j: '0' if j == 0 else f's{40+j}'

if A.diag: e('s_memrealtime s[60:61]')
stamp()
e(f'''
s_cmp_ge_u32 s2, 256
s_cbranch_scc1 L_end
v_lshrrev_b32 v2, 6, v0
s_load_dwordx2 s[4:5], s[0:1], 0
s_load_dwordx8 s[20:27], s[0:1], 112
v_readfirstlane_b32 s{sW}, v2
v_and_b32 v{vLN}, 63, v0
''')
e(f'''
s_and_b32 s6, s{sW}, 1
s_mul_i32 s6, s6, 56
s_add_u32 s7, s6, 40
s_add_u32 s6, s6, 8
s_load_dwordx8 s[8:15], s[0:1], s6
s_load_dwordx4 s[16:19], s[0:1], s7
''')
if not A.nocodepf:
    e(f'''
s_getpc_b64 s[56:57]
L_pc:
s_lshr_b32 s55, s2, 3
s_and_b32 s55, s55, 3
s_lshl_b32 s55, s55, 12
v_lshl_add_u32 v3, v{vLN}, 6, s55
v_min_u32 v3, L_codeend-L_pc-4, v3
v_mov_b32 v5, s57
v_add_co_u32 v4, vcc, s56, v3
v_addc_co_u32 v5, vcc, 0, v5, vcc
s_cmp_lg_u32 s{sW}, 0
s_cbranch_scc1 L_nocp
global_load_dword v{vCP}, v[4:5], off
L_nocp:
''')
e(f'''
s_and_b32 s55, s2, 7
s_lshr_b32 s58, s2, 3
s_lshl_b32 s59, s55, 7
s_lshl_b32 s62, s58, 2
s_add_u32 s62, s62, s59
s_lshl_b32 s63, s58, 16
s_add_u32 s63, s63, s59
''')
e(f'''
v_lshrrev_b32 v2, 5, v0
v_and_b32 v3, 31, v0
v_lshlrev_b32 v3, 4, v3
s_lshl_b32 s59, s2, 13
v_lshl_add_u32 v2, v2, 10, s59
v_add_u32 v2, v2, v3
v_lshrrev_b32 v6, 3, v0
v_and_b32 v7, 7, v0
v_lshlrev_b32 v7, 4, v7
v_lshl_add_u32 v6, v6, 10, s63
v_add_u32 v6, v6, v7
v_add_u32 v7, 0x8000, v6
s_lshr_b32 s58, s{sW}, 1
s_lshr_b32 s59, s62, 1
s_add_u32 s59, s59, s58
s_lshl_b32 s59, s59, 8
v_lshl_add_u32 v8, v{vLN}, 2, s59
''')
e(f'''
s_waitcnt lgkmcnt(0)
global_load_dwordx4 {vr(vGX,4)}, v2, s[4:5]
global_load_dwordx4 {vr(vGX+4,4)}, v2, s[4:5] offset:512
global_load_dwordx4 {vr(vGWt,4)}, v3, s[20:21]
global_load_dwordx4 {vr(vGWt+4,4)}, v3, s[20:21] offset:512
s_load_dword s{sE}, s[26:27], 8192
s_load_dword s{sLDT}, s[16:17], s62
s_load_dword s{sD}, s[18:19], s62
global_load_dword v{vLA}, v8, s[8:9]
global_load_dword v{vAI}, v8, s[10:11]
global_load_dword v{vCR}, v8, s[12:13]
global_load_dword v{vCI}, v8, s[14:15]
global_load_dwordx4 {vr(vPF,4)}, v6, s[4:5]
global_load_dwordx4 {vr(vPF+4,4)}, v7, s[4:5]
''')
stamp()
e(f'''
s_mov_b32 s28, s4
s_mov_b32 s29, s5
s_mov_b32 s30, 0x200000
s_mov_b32 s31, 0x20000
s_mov_b32 s32, s22
s_mov_b32 s33, s23
s_mov_b32 s34, 0x200000
s_mov_b32 s35, 0x20000
s_mov_b32 s36, s26
s_mov_b32 s37, s27
s_mov_b32 s38, {0x200000 if (A.diag or A.dumpk) else 8256}
s_mov_b32 s39, 0x20000
''')
for j in range(1, 8): e(f's_mov_b32 s{40+j}, {j * 262144}')
e(f'''
s_mul_i32 s59, s{sW}, {STG}
v_lshl_add_u32 v{vSW}, v{vLN}, 3, s59
v_and_b32 v2, 31, v{vLN}
v_lshrrev_b32 v3, 5, v{vLN}
v_mul_u32_u24 v4, {ROW}, v2
v_lshl_add_u32 v5, v3, 4, s59
v_add_u32 v{vYA}, v4, v5
''')
XPOS = [7,6,5,4,3,2,1,0] + [256+x for x in (8,6,4,4,4,2,0,0)] + [512,516,520,520,768,772,776,776] + [1024,1032,1280,1288,1536,1544,1792,1800]
G1 = [0,1,2,3,12,13,14,15,20,21,22,23,24,25,26,27]
slot = {260: 43}
free1 = [s for s in range(32, 46) if s != 43]; free2 = list(range(46, 59))
for i in range(32):
    p = XPOS[i]
    if p not in slot: slot[p] = (free1 if i in G1 else free2).pop(0)
assert len(slot) == 27 and not free1 and not free2
e(f'v_mov_b32 v6, 0')
for i in range(32): e(f'v_writelane_b32 v6, {slot[XPOS[i]]}, {i}')
e(f'''
v_mov_b32 v7, v6
s_nop 1
v_permlane32_swap_b32 v7, v6
v_mul_u32_u24 v7, {ROW}, v7
v_add_u32 v{vXA}, v7, v5
v_lshlrev_b32 v4, 4, v2
v_add_u32 v4, s59, v4
v_add_u32 v4, 224, v4
v_lshl_add_u32 v{vKW}, v3, 3, v4
v_lshl_add_u32 v{vKW2}, v3, 9, v4
v_lshl_add_u32 v{vKW3}, v3, 10, v4
v_lshlrev_b32 v{vUS}, 1, v0
v_add_u32 v{vUS}, {UB}, v{vUS}
v_lshl_add_u32 v{vEW}, v{vLN}, 4, s59
v_add_u32 v{vEW}, {EXO}, v{vEW}
s_lshl_b32 s55, s{sW}, 10
v_lshl_add_u32 v{vER0}, v{vLN}, 4, s55
v_add_u32 v{vER0}, {EXO}, v{vER0}
v_add_u32 v{vER1}, {2*STG}, v{vER0}
v_lshl_add_u32 v{vUL}, v0, 10, s62
''')
e(f'''
v_and_b32 v2, 15, v{vLN}
v_lshrrev_b32 v3, 4, v{vLN}
s_and_b32 s55, s{sW}, 1
v_add_u32 v4, 1, v2
v_lshrrev_b32 v4, 1, v4
v_lshl_add_u32 v4, v3, 2, v4
v_lshlrev_b32 v4, 2, v4
v_and_b32 v5, 1, v2
v_xor_b32 v5, 1, v5
v_mul_u32_u24 v5, {UO}, v5
s_mul_i32 s56, s58, {UCH}
s_lshl_b32 s57, s55, 7
s_add_u32 s56, s56, s57
s_add_u32 s56, s56, {UB}
v_add3_u32 v{vAA}, v4, v5, s56
v_and_b32 v4, 7, v2
v_lshrrev_b32 v5, 3, v2
v_lshlrev_b32 v6, 1, v4
v_sub_u32 v6, v6, v3
v_lshlrev_b32 v6, 4, v6
v_mul_u32_u24 v7, {STG}, v5
s_mul_i32 s56, s58, {2*STG}
s_sub_u32 s56, s56, s57
s_add_u32 s56, s56, {17*16 - 32 - 64}
v_add3_u32 v{vBA}, v6, v7, s56
v_lshlrev_b32 v6, 4, v4
v_lshl_add_u32 v6, v3, 2, v6
v_lshlrev_b32 v{vGL}, 2, v6
s_lshl_b32 s56, s{sW}, 9
v_add_u32 v{vGL}, s56, v{vGL}
v_lshl_add_u32 v6, v5, 1, v6
s_lshl_b32 s56, s{sW}, 17
s_add_u32 s56, s56, s62
v_lshl_add_u32 v{vST}, v6, 10, s56
v_cvt_f32_u32 v{vSG+1}, v5
v_fma_f32 v{vSG}, v{vSG+1}, -2.0, 1.0
v_and_b32 v6, 1, v{vLN}
v_cmp_eq_u32 s[{sODD}:{sODD+1}], 1, v6
s_lshl_b32 s56, s2, 2
s_add_u32 s56, s56, s{sW}
s_lshl_b32 s56, s56, 3
v_mov_b32 v{vGA}, s56
''')
e(f'''
v_mov_b32 v6, 0x3f80
v_mov_b32 v7, 0x3f80
ds_write_b64 v{vSW}, v[6:7]
s_cmp_lg_u32 s{sW}, 0
s_cbranch_scc1 L_nozero
v_lshrrev_b32 v6, 3, v{vLN}
v_and_b32 v6, 3, v6
v_mul_u32_u24 v6, {UO}, v6
v_and_b32 v7, 7, v{vLN}
v_lshl_add_u32 v6, v7, 2, v6
v_add_u32 v6, {UB}, v6
v_mov_b32 v7, 0
ds_write_b32 v6, v7
L_nozero:
s_waitcnt lgkmcnt(0)
s_mul_i32 s{sTAG}, s{sE}, 0x9E3779B1
s_add_u32 s{sTAG}, s{sTAG}, 0x7F4A7C15
s_lshl_b32 s55, s58, 4
s_lshr_b32 s{sLDT}, s{sLDT}, s55
s_lshl_b32 s{sLDT}, s{sLDT}, 16
s_lshr_b32 s{sD}, s{sD}, s55
s_lshl_b32 s{sD}, s{sD}, 16
v_mov_b32 v{vDK}, 0
v_writelane_b32 v{vDK}, s{sD}, 32
''')
vDT, vDTL, vDTR, vDT2 = vKB, vKB + 1, vKB + 2, vKB + 3
e(f'''
v_mov_b32 v{vDT}, s{sLDT}
v_mul_f32 v{vDT}, 0x3fb8aa3b, v{vDT}
v_exp_f32 v{vDT}, v{vDT}
v_mov_b32 v9, s{sTAG}
v_cvt_pk_bf16_f32 v{vDT}, v{vDT}, v{vDT}
v_and_b32 v{vDT}, 0xffff0000, v{vDT}
v_mul_f32 v{vDTL}, 0xbfb8aa3b, v{vDT}
v_mul_f32 v{vDTR}, 0.15915494, v{vDT}
v_add_f32 v{vDT2}, v{vDT}, v{vDT}
''')
e(f'v_dot2_f32_bf16 v2, v{vGX}, v{vGWt}, 0')
for k in range(1, 8): e(f'v_dot2_f32_bf16 v2, v{vGX+k}, v{vGWt+k}, v2')
stamp()
for r in (8, 4, 2, 1): e(f'v_add_f32_dpp v2, v2, v2 row_ror:{r} row_mask:0xf bank_mask:0xf')
e(f'''
v_add_f32_dpp v2, v2, v2 row_bcast:15 row_mask:0xa bank_mask:0xf
v_mul_f32 v2, 0xbfb8aa3b, v2
v_exp_f32 v2, v2
v_add_f32 v2, 1.0, v2
v_rcp_f32 v2, v2
v_mov_b32_dpp v3, v2 row_bcast:31 row_mask:0xc bank_mask:0xf
v_cvt_pk_bf16_f32 v8, v3, v2
s_lshl_b64 exec, 1, 63
buffer_store_dwordx2 v[8:9], v{vGA}, s[36:39], 0 offen sc1
s_mov_b64 exec, -1
s_waitcnt vmcnt(1)
''')
stamp()
def uload(j): return f'buffer_load_dword v{vU+j}, v{vUL}, s[28:31], {sOFF(j)} offen'
for j in range(A.n0): e(uload(j))
def gloads():
    return [f'buffer_load_dwordx4 {vr(vG+4*G,4)}, v{vGL}, s[36:39], 0 offen offset:{2048*G} sc1' if G < 2 else
            f'buffer_load_dwordx4 {vr(vG+4*G,4)}, v{vGL}, s[36:39], s63 offen offset:{2048*(G-2)} sc1' for G in range(4)]
e('s_mov_b32 s63, 4096')
paced = [uload(j) for j in range(A.n0, 8)] + gloads()

b = vKB + 4
A2 = [b, b + 1]; B2 = [b + 2, b + 3]; b += 4
W1 = [b, b + 2]; W8 = [b + 4, b + 6]; Y = [b + 8, b + 10]; X = [b + 12, b + 14]; Z = [b + 16, b + 18]; Z2 = [b + 20, b + 22]; T = [b + 24, b + 26]; b += 28
PK = [b, b + 2, b + 4, b + 6]; b += 8
E_ = [b, b + 1]; TH = [b + 2, b + 3]; RN = [b + 4, b + 5]; b += 6
def unpack(dst0, dst1, src): e(f'v_lshlrev_b32 v{dst0}, 16, v{src}\nv_and_b32 v{dst1}, 0xffff0000, v{src}')
unpack(A2[0], A2[1], vLA)
e(f'''
v_mul_f32 v{A2[0]}, 0x3fb8aa3b, v{A2[0]}
v_mul_f32 v{A2[1]}, 0x3fb8aa3b, v{A2[1]}
v_exp_f32 v{A2[0]}, v{A2[0]}
v_exp_f32 v{A2[1]}, v{A2[1]}
''')
unpack(B2[0], B2[1], vAI)
e(f'v_cvt_pk_bf16_f32 v2, v{A2[0]}, v{A2[1]}')
e(f'v_mul_f32 v{B2[0]}, v{B2[0]}, v{vDTR}\nv_mul_f32 v{B2[1]}, v{B2[1]}, v{vDTR}')
unpack(A2[0], A2[1], 2)
e(f'v_mul_f32 v{A2[0]}, v{A2[0]}, v{vDTL}\nv_mul_f32 v{A2[1]}, v{A2[1]}, v{vDTL}')
def weval(W, p):
    for k in range(2):
        if p == 1:
            e(f'v_exp_f32 v{E_[k]}, v{A2[k]}\nv_rndne_f32 v{RN[k]}, v{B2[k]}\nv_sub_f32 v{TH[k]}, v{B2[k]}, v{RN[k]}')
        else:
            e(f'v_mul_f32 v{E_[k]}, {hex(0x41000000)}, v{A2[k]}\nv_mul_f32 v{TH[k]}, {hex(0x41000000)}, v{B2[k]}')
            e(f'v_exp_f32 v{E_[k]}, v{E_[k]}\nv_rndne_f32 v{RN[k]}, v{TH[k]}\nv_sub_f32 v{TH[k]}, v{TH[k]}, v{RN[k]}')
    for k in range(2): e(f'v_cos_f32 v{W[k]}, v{TH[k]}\nv_sin_f32 v{W[k]+1}, v{TH[k]}')
    if p == 8:
        unpack(X[0], X[1], vCR); unpack(X[0] + 1, X[1] + 1, vCI)
    for k in range(2): e(f'v_mul_f32 v{W[k]}, v{W[k]}, v{E_[k]}\nv_mul_f32 v{W[k]+1}, v{W[k]+1}, v{E_[k]}')
weval(W8, 8)
for k in range(2): e(f'v_mul_f32 v{X[k]}, v{X[k]}, v{vDT2}\nv_mul_f32 v{X[k]+1}, v{X[k]+1}, v{vDT2}')
weval(W1, 1)
pkc = [0]
PACE = [int(x) for x in A.pace.split(',')]
def cmul(R, P, Q):
    for k in range(2): e(f'v_pk_mul_f32 {vr(T[k],2)}, {vr(P[k],2)}, {vr(Q[k],2)} op_sel_hi:[1,0]')
    for k in range(2): e(f'v_pk_fma_f32 {vr(R[k],2)}, {vr(P[k],2)}, {vr(Q[k],2)}, {vr(T[k],2)} op_sel:[1,1,0] op_sel_hi:[0,1,1] neg_lo:[1,0,0]')
def put(R, sl, conj):
    p = PK[pkc[0] % 4]; pkc[0] += 1
    for k in range(2): e(f'v_cvt_pk_bf16_f32 v{p+k}, v{R[k]}, {"-" if conj else ""}v{R[k]+1}')
    e(f'ds_write_b64 v{vSW}, {vr(p,2)} offset:{sl*ROW}')
    if pkc[0] in PACE and paced: e(paced.pop(0))
stamp()
put(W8, 1, True)
cmul(Y, W8, W8); put(Y, 2, True)
for bb in range(3, 32): cmul(Y, Y, W8); put(Y, bb, True)
cmul(Y, Y, W8)
put(X, slot[0], False)
cmul(Z, X, Y); put(Z, slot[256], False)
for base in (256, 512, 768, 1024, 1280, 1536, 1792):
    cmul(Z2, Z, W8); put(Z2, slot[base + 8], False)
    if base < 1792: cmul(Z, Z, Y); put(Z, slot[base + 256], False)
for r in range(1, 8):
    cmul(X, X, W1); put(X, slot[r], False)
    if r in (2, 4, 6):
        cmul(Z, X, Y); put(Z, slot[256 + r], False)
        if r == 4:
            cmul(Z, Z, Y); put(Z, slot[516], False)
            cmul(Z, Z, Y); put(Z, slot[772], False)
stamp()
b = (b + 3) // 4 * 4
RX = [b + 8 * i for i in range(4)]; b += 32
D = b; b += 16
def kread(ms): e(f'ds_read_b128 {vr(RX[ms%4],4)}, v{vXA} offset:{32*ms}\nds_read_b128 {vr(RX[ms%4]+4,4)}, v{vYA} offset:{32*ms}')
def stage(j):
    return [f'ds_write_b16 v{vUS}, v{vU+j} offset:{512*j+32}',
            f'ds_write_b16 v{vUS}, v{vU+j} offset:{512*j+30+UO}',
            f'ds_write_b16_d16_hi v{vUS}, v{vU+j} offset:{512*j+32+UCH}',
            f'ds_write_b16_d16_hi v{vUS}, v{vU+j} offset:{512*j+30+UO+UCH}']
for ms in range(3): kread(ms)
st01 = stage(0) + stage(1) + stage(2) + stage(3)
for ms in range(16):
    if ms + 3 < 16: kread(ms + 3)
    e(f'v_mfma_f32_32x32x16_bf16 {vr(D,16)}, {vr(RX[ms%4],4)}, {vr(RX[ms%4]+4,4)}, {vr(D,16) if ms else 0}')
    if ms >= 12:
        for t in st01[4 * (ms - 12): 4 * (ms - 11)]: e(t)
stamp()
for t in paced: e(t)
P = RX[0]
e(f'''
v_mov_b32 v4, 0
v_mov_b32 v5, 0
v_mov_b32 v6, 0
v_mov_b32 v7, 0
v_lshl_add_u32 v2, v{vLN}, 4, s59
s_mov_b64 exec, 0x3fff
ds_write_b128 v2, v[4:7]
s_mov_b64 exec, -1
v_add_f32 v{D+3}, v{D+3}, v{vDK}
v_cvt_pk_bf16_f32 v{P}, v{D}, v{D+1}
v_cvt_pk_bf16_f32 v{P+1}, v{D+2}, v{D+3}
ds_write_b64 v{vKW}, {vr(P,2)}
v_cvt_pk_bf16_f32 v{P+2}, v{D+4}, v{D+5}
v_cvt_pk_bf16_f32 v{P+3}, v{D+6}, v{D+7}
ds_write_b64 v{vKW}, {vr(P+2,2)} offset:512
v_cvt_pk_bf16_f32 v{P+4}, v{D+10}, v{D+10}
v_cvt_pk_bf16_f32 v{P+5}, v{D+9}, v{D+9}
v_cvt_pk_bf16_f32 v{P+6}, v{D+9}, v{D+8}
v_cvt_pk_bf16_f32 v{P+7}, v{D+8}, v{D+8}
ds_write_b128 v{vKW2}, {vr(P+4,4)} offset:1024
''')
for ee in range(2):
    V0, V8 = D + 12 + 2 * ee, D + 13 + 2 * ee; Q = P + 8 + 4 * ee
    e(f'''
v_cndmask_b32 v2, v{V0}, v{V8}, s[{sODD}:{sODD+1}]
v_cvt_pk_bf16_f32 v{Q}, v{V8}, v{V8}
v_cvt_pk_bf16_f32 v{Q+2}, v{V0}, v{V0}
v_cvt_pk_bf16_f32 v{Q+3}, v{V0}, v{V0}
v_cvt_pk_bf16_f32 v{Q+1}, v{V8}, v2
ds_write_b128 v{vKW3}, {vr(Q,4)} offset:{2048+512*ee}
''')
e('PUBLISH\ns_barrier')
stamp()
if A.dumpk:
    e(f'''
s_lshl_b32 s55, s2, 2
s_add_u32 s55, s55, s{sW}
s_lshl_b32 s55, s55, 12
s_add_u32 s55, s55, 0x100000
v_lshl_add_u32 v2, v{vLN}, 4, s59
v_lshlrev_b32 v3, 4, v{vLN}
''')
    for q in range(4):
        e(f'ds_read_b128 v[4:7], v2 offset:{224+1024*q}\nbuffer_store_dwordx4 v[4:7], v3, s[36:39], s55 offen offset:{1024*q}\ns_waitcnt vmcnt(0)') if False else None

NB = 8
RB = [vKB + 4 * i for i in range(NB)]
vP = vKB + 4 * NB
vH = vP + 16
vWt = vH + 16; vO = vWt + 4; vPK = vO + 4
aA = lambda mu, M: 64 * mu + 4 * M
aC = lambda G, q: 128 + 16 * (G & 1) + 4 * q
mf = []
steps = []
start = {}
for G in range(4):
    start[G] = len(mf)
    seen = set()
    order = [(0, nu) for nu in range(4 * G + 3, -1, -1)] + [(1, nu) for nu in range(4 * G + 4)]
    for mu, nu in order:
        for q in range(4):
            M = 4 * G + q - nu
            if M < 0: continue
            mf.append(dict(G=G, q=q, mu=mu, nu=nu, M=M, first=q not in seen)); seen.add(q)
N = len(mf); start[4] = N
pre = [[] for _ in range(N + 1)]
keys = []
for i, m in enumerate(mf):
    k = (m['G'], m['mu'], m['nu'])
    if not keys or keys[-1][0] != k: keys.append([k, i, i])
    keys[-1][2] = i
breg = {}
for n, (k, f, l) in enumerate(keys):
    r = RB[n % NB]; breg[k] = r
    pos = max(0, f - A.la)
    if n >= NB: pos = max(pos, keys[n - NB][2] + 1)
    pre[pos].append((f, f'ds_read_b128 {vr(r,4)}, v{vBA} offset:{256*k[2] + 64*(1-k[1])}'))
def aread(G, mu, Mq):
    M = 4 * G + Mq; o = 64 * Mq + 16 * mu
    return [f'ds_read2_b32 {ar(aA(mu,M),2)}, v{vAA} offset0:{o} offset1:{o+1}', f'ds_read2_b32 {ar(aA(mu,M)+2,2)}, v{vAA} offset0:{o+2} offset1:{o+3}']
def areads(G):
    r = []
    if G: r.append(f'v_add_u32 v{vAA}, 0x400, v{vAA}')
    for mu in range(2):
        for Mq in range(4): r += aread(G, mu, Mq)
    return r
def exw(G, q): return f'ds_write_b128 v{vEW}, {ar(aC(G,q),4)} offset:{(4*G+q)*1024}'
def exr(G, H):
    r = [f'ds_read_b128 {vr(vP+4*w,4)}, v{vER0 if w < 2 else vER1} offset:{(w&1)*STG + 4096*G}' for w in range(4)]
    for c in range(2):
        for h in range(2): r.append(f'v_pk_add_f32 {vr(H+4*c+2*h,2)}, {vr(vP+8*c+2*h,2)}, {vr(vP+8*c+4+2*h,2)}')
    return r
def mix(G, H):
    g = vG + 4 * G
    r = [f'v_lshlrev_b32 v{vWt}, 16, v{g}', f'v_and_b32 v{vWt+1}, 0xffff0000, v{g}', f'v_lshlrev_b32 v{vWt+2}, 16, v{g+2}', f'v_and_b32 v{vWt+3}, 0xffff0000, v{g+2}']
    for h in range(2): r.append(f'v_pk_fma_f32 {vr(vWt+2*h,2)}, {vr(vWt+2*h,2)}, {vr(vSG,2)}, {vr(vSG,2)} op_sel:[0,0,1] op_sel_hi:[1,0,1]')
    for c in range(2):
        for h in range(2): r.append(f'v_pk_mul_f32 {vr(H+4*c+2*h,2)}, {vr(H+4*c+2*h,2)}, {vr(vWt+2*h,2)}')
    for k in range(2):
        for c in range(2):
            r.append(f'v_add_f32_dpp v{vO+2*k+c}, v{H+4*c+k}, v{H+4*c+k} row_ror:8 row_mask:0xf bank_mask:0x3')
        for c in range(2):
            r.append(f'v_add_f32_dpp v{vO+2*k+c}, v{H+4*c+2+k}, v{H+4*c+2+k} row_ror:8 row_mask:0xf bank_mask:0xc')
    for k in range(2):
        r.append(f'v_cvt_pk_bf16_f32 v{vPK+2*(G&1)+k}, v{vO+2*k}, v{vO+2*k+1}')
    for k in range(2):
        r.append(f'buffer_store_dword v{vPK+2*(G&1)+k}, v{vST}, s[32:35], {sOFF(2*G)} offen' + (f' offset:1024' if k else ''))
    return r
def check():
    r = ['s_waitcnt vmcnt(0)', 'L_chk:']
    tags = [vG + 1 + 2 * i for i in range(8)]
    for i, t in enumerate(tags): r.append(f'v_xor_b32 v{vP+i}, s{sTAG}, v{t}')
    r += [f'v_or3_b32 v{vP}, v{vP}, v{vP+1}, v{vP+2}', f'v_or3_b32 v{vP+3}, v{vP+3}, v{vP+4}, v{vP+5}',
          f'v_or3_b32 v{vP}, v{vP}, v{vP+6}, v{vP+7}', f'v_or_b32 v{vP}, v{vP}, v{vP+3}',
          f'v_cmp_ne_u32 vcc, 0, v{vP}', 's_cbranch_vccnz L_slow', 'L_ok:']
    return r
load = [len(p) for p in pre]
def place(seq, at, cap=2):
    i = at
    for t in seq:
        atomic = t if isinstance(t, list) else [t]
        while i < N and load[i] + 1 > cap: i += 1
        for u_ in atomic: pre[i].append((10**6, u_))
        load[i] += len(atomic)
    return i
last = {}
for i, m in enumerate(mf): last[(m['G'], m['q'])] = i
place(areads(0), 0, cap=99) if False else None
a0 = areads(0)
for t in a0[:4]: pre[0].append((-1, t)); load[0] += 1
i = place(a0[4:], 0, cap=4)
i = place(areads(1), i + 1, cap=3)
for q in range(4): place([exw(0, q)], last[(0, q)] + 5, cap=3)
i = start[2]
for q in range(4): i = max(i, place([exw(1, q)], last[(1, q)] + 5, cap=3))
i = place(stage(4) + stage(5), i, cap=3)
i = place([['PUBLISH', 's_barrier']], i)
i = place(areads(2)[:9], i + 1, cap=3)
i = place(exr(0, vH) + exr(1, vH + 8), i, cap=3)
i = place(areads(2)[9:], i, cap=3)
dst = []; stamp(dst)
i = max(i, start[2] + A.posg)
i = place([dst + check()], i, cap=99)
dst = []; stamp(dst)
i = place(mix(0, vH) + mix(1, vH + 8) + dst, i, cap=4)
i = place(stage(6) + stage(7), i, cap=3)
assert i < start[3], (i, start)
i = start[3]
for q in range(4): i = max(i, place([exw(2, q)], last[(2, q)] + 5, cap=3))
i = place([['PUBLISH', 's_barrier']], i)
i = place(exr(2, vH) + mix(2, vH), i + 1, cap=3)
i = place(areads(3), i, cap=3)
assert i < start[3] + 40, (i, start)
for q in range(3): place([exw(3, q)], min(N, last[(3, q)] + 5), cap=3)
for i, m in enumerate(mf):
    for _, t in sorted(pre[i], key=lambda z: z[0]): e(t)
    if i == start[m['G']] and i: stamp()
    c = ar(aC(m['G'], m['q']), 4)
    e(f"v_mfma_f32_16x16x32_bf16 {c}, {ar(aA(m['mu'], m['M']), 4)}, {vr(breg[(m['G'], m['mu'], m['nu'])], 4)}, {0 if m['first'] else c}")
for _, t in pre[N]: e(t)
stamp()
e(exw(3, 3)); e('PUBLISH\ns_barrier')
for t in exr(3, vH) + mix(3, vH): e(t)
stamp()
e(f'''
s_or_b32 s55, s2, s{sW}
s_cmp_lg_u32 s55, 0
s_cbranch_scc1 L_noep
v_mov_b32 v2, s{sTAG}
v_mov_b32 v3, 0x2000
s_mov_b64 exec, 1
buffer_store_dword v2, v3, s[36:39], 0 offen sc1
s_mov_b64 exec, -1
L_noep:
''')
if A.diag:
    e('s_waitcnt vmcnt(0)'); stamp(); e('s_memrealtime s[62:63]\ns_waitcnt lgkmcnt(0)')
    ns = stamp_n[0]
    e(f's_lshl_b32 s55, s2, 2\ns_add_u32 s55, s55, s{sW}\ns_lshl_b32 s55, s55, 7\ns_add_u32 s55, s55, 0x100000\nv_mov_b32 v2, 0')
    for k in range(ns): e(f'v_writelane_b32 v2, s{64+2*k}, {k}')
    e(f'v_writelane_b32 v2, s60, 30\nv_writelane_b32 v2, s62, 31\nv_writelane_b32 v2, s{sCNT}, 29\nv_lshlrev_b32 v3, 2, v{vLN}\ns_lshr_b64 exec, -1, 32\nbuffer_store_dword v2, v3, s[36:39], s55 offen')
e('L_end:\ns_endpgm')
e(f'''
L_slow:
s_add_u32 s{sCNT}, s{sCNT}, 1
s_cmp_gt_u32 s{sCNT}, 20000
s_cbranch_scc1 L_ok
s_sleep 2
''')
for t in gloads(): e(t)
e('s_waitcnt vmcnt(0)\ns_branch L_chk\nL_codeend:')
idx = next(i for i, x in enumerate(L) if x.text.startswith('s_mov_b32 s28'))
L.insert(idx, Ins(f's_mov_b32 s{sCNT}, 0'))

for x in L:
    if 'L_codeend-L_pc-4' in x.text: x.text = x.text.replace('L_codeend-L_pc-4', 'CODE_BYTES')
ins = finalize(L)
body = emit(ins).replace('CODE_BYTES', 'L_codeend-L_pc-4')
ref = open('gated_mix__ssm_conv_s4d__ssm_conv_s4d__prompt.s.ref').read()
head = ref[:ref.index('; Override launch geometry')]
src = head + f'''; @launch grid=(256,1,1) block=(256,1,1) lds={LDS}
.amdgcn_target "amdgcn-amd-amdhsa--gfx950"
.text
.globl {NAME}
.p2align 8
.type {NAME},@function
{NAME}:
''' + body + f'''.section .rodata,"a"
.p2align 6
.amdhsa_kernel {NAME}
  .amdhsa_next_free_vgpr 416
  .amdhsa_next_free_sgpr 102
  .amdhsa_accum_offset 256
  .amdhsa_group_segment_fixed_size 0
  .amdhsa_kernarg_size 144
  .amdhsa_user_sgpr_count 2
  .amdhsa_user_sgpr_kernarg_segment_ptr 1
  .amdhsa_system_sgpr_workgroup_id_x 1
.end_amdhsa_kernel
'''
open(A.o, 'w').write(src)
print('max vgpr', max(r[1] for x in ins for r in (x.rd | x.wr) if r[0] == 'v'), 'starts', start)
```

```python
import sys, argparse
from asmlib import *
ap = argparse.ArgumentParser()
ap.add_argument('-o', default='gated_mix__ssm_conv_s4d__ssm_conv_s4d__prompt.s')
ap.add_argument('--diag', type=int, default=0)
ap.add_argument('--posg', type=int, default=30)
ap.add_argument('--la', type=int, default=6)
ap.add_argument('--nocodepf', type=int, default=0)
ap.add_argument('--n0', type=int, default=5)
ap.add_argument('--pace', default='8,26,44')
ap.add_argument('--lin', type=int, default=0)
ap.add_argument('--noupf', type=int, default=0)
ap.add_argument('--stpol', default='')
ap.add_argument('--delay', type=int, default=0)
ap.add_argument('--dumpk', type=int, default=0)
A = ap.parse_args()

NAME = 'gated_mix__ssm_conv_s4d__ssm_conv_s4d__prompt_kernel'
STG = 31232; ROW = 528; UB = 4 * STG; UCH = 8320; UO = 4160; LDS = UB + 2 * UCH
EXO = 4352
L = []
def e(t):
    for line in t.strip().split('\n'):
        line = line.strip()
        if line: L.append(Ins(line))
def vr(b, n): return f'v[{b}:{b+n-1}]' if n > 1 else f'v{b}'
def ar(b, n): return f'a[{b}:{b+n-1}]'
stamp_n = [0]
def stamp(dst=None):
    if not A.diag: return None
    k = 64 + 2 * stamp_n[0]; stamp_n[0] += 1
    t = f's_memtime s[{k}:{k+1}]'
    if dst is None: e(t)
    else: dst.append(t)

vTID, vLN = 0, 1
vT = [2, 3, 4, 5, 6, 7, 8, 9]
vSW, vXA, vYA, vKW, vKW2, vKW3, vUS, vAA, vBA, vEW, vER0, vER1, vST, vGL, vUL, vDK = range(10, 26)
vSG = 26
vU = 28
vG = 36
vGX, vGWt = 52, 60
vPF = 68
vCP = 76
vLA, vAI, vCR, vCI = 77, 78, 79, 80
vGA = 81
vKB = 84
sW, sTAG, sD, sLDT, sE = 3, 48, 49, 50, 51
sODD = 52
sCNT = 54
sOFF = lambda j: '0' if j == 0 else f's{40+j}'

if A.diag: e('s_memrealtime s[60:61]')
stamp()
e(f'''
s_cmp_ge_u32 s2, 256
s_cbranch_scc1 L_end
v_lshrrev_b32 v2, 6, v0
s_load_dwordx2 s[4:5], s[0:1], 0
s_load_dwordx8 s[20:27], s[0:1], 112
v_readfirstlane_b32 s{sW}, v2
v_and_b32 v{vLN}, 63, v0
''')
e(f'''
s_and_b32 s6, s{sW}, 1
s_mul_i32 s6, s6, 56
s_add_u32 s7, s6, 40
s_add_u32 s6, s6, 8
s_load_dwordx8 s[8:15], s[0:1], s6
s_load_dwordx4 s[16:19], s[0:1], s7
''')
if not A.nocodepf:
    e(f'''
s_getpc_b64 s[56:57]
L_pc:
s_lshr_b32 s55, s2, 3
s_and_b32 s55, s55, 3
s_lshl_b32 s55, s55, 12
v_lshl_add_u32 v3, v{vLN}, 6, s55
v_min_u32 v3, L_codeend-L_pc-4, v3
v_mov_b32 v5, s57
v_add_co_u32 v4, vcc, s56, v3
v_addc_co_u32 v5, vcc, 0, v5, vcc
s_cmp_lg_u32 s{sW}, 0
s_cbranch_scc1 L_nocp
global_load_dword v{vCP}, v[4:5], off
L_nocp:
''')
e(f'''
{'s_lshr_b32 s55, s2, 5' if A.lin else 's_and_b32 s55, s2, 7'}
{'s_and_b32 s58, s2, 31' if A.lin else 's_lshr_b32 s58, s2, 3'}
s_lshl_b32 s59, s55, 7
s_lshl_b32 s62, s58, 2
s_add_u32 s62, s62, s59
s_lshl_b32 s63, s58, 16
s_add_u32 s63, s63, s59
''')
e(f'''
v_lshrrev_b32 v2, 5, v0
v_and_b32 v3, 31, v0
v_lshlrev_b32 v3, 4, v3
s_lshl_b32 s59, s2, 13
v_lshl_add_u32 v2, v2, 10, s59
v_add_u32 v2, v2, v3
v_lshrrev_b32 v6, 3, v0
v_and_b32 v7, 7, v0
v_lshlrev_b32 v7, 4, v7
v_lshl_add_u32 v6, v6, 10, s63
v_add_u32 v6, v6, v7
v_add_u32 v7, 0x8000, v6
s_lshr_b32 s58, s{sW}, 1
s_lshr_b32 s59, s62, 1
s_add_u32 s59, s59, s58
s_lshl_b32 s59, s59, 8
v_lshl_add_u32 v8, v{vLN}, 2, s59
''')
e(f'''
s_waitcnt lgkmcnt(0)
global_load_dwordx4 {vr(vGX,4)}, v2, s[4:5]
global_load_dwordx4 {vr(vGX+4,4)}, v2, s[4:5] offset:512
global_load_dwordx4 {vr(vGWt,4)}, v3, s[20:21]
global_load_dwordx4 {vr(vGWt+4,4)}, v3, s[20:21] offset:512
s_load_dword s{sE}, s[26:27], 8192
s_load_dword s{sLDT}, s[16:17], s62
s_load_dword s{sD}, s[18:19], s62
global_load_dword v{vLA}, v8, s[8:9]
global_load_dword v{vAI}, v8, s[10:11]
global_load_dword v{vCR}, v8, s[12:13]
global_load_dword v{vCI}, v8, s[14:15]
{'' if A.noupf else f'global_load_dwordx4 {vr(vPF,4)}, v6, s[4:5]'}
{'' if A.noupf else f'global_load_dwordx4 {vr(vPF+4,4)}, v7, s[4:5]'}
''')
stamp()
e(f'''
s_mov_b32 s28, s4
s_mov_b32 s29, s5
s_mov_b32 s30, 0x200000
s_mov_b32 s31, 0x20000
s_mov_b32 s32, s22
s_mov_b32 s33, s23
s_mov_b32 s34, 0x200000
s_mov_b32 s35, 0x20000
s_mov_b32 s36, s26
s_mov_b32 s37, s27
s_mov_b32 s38, {0x200000 if (A.diag or A.dumpk) else 8256}
s_mov_b32 s39, 0x20000
''')
for j in range(1, 8): e(f's_mov_b32 s{40+j}, {j * 262144}')
e(f'''
s_mul_i32 s59, s{sW}, {STG}
v_lshl_add_u32 v{vSW}, v{vLN}, 3, s59
v_and_b32 v2, 31, v{vLN}
v_lshrrev_b32 v3, 5, v{vLN}
v_mul_u32_u24 v4, {ROW}, v2
v_lshl_add_u32 v5, v3, 4, s59
v_add_u32 v{vYA}, v4, v5
''')
XPOS = [7,6,5,4,3,2,1,0] + [256+x for x in (8,6,4,4,4,2,0,0)] + [512,516,520,520,768,772,776,776] + [1024,1032,1280,1288,1536,1544,1792,1800]
G1 = [0,1,2,3,12,13,14,15,20,21,22,23,24,25,26,27]
slot = {260: 43}
free1 = [s for s in range(32, 46) if s != 43]; free2 = list(range(46, 59))
for i in range(32):
    p = XPOS[i]
    if p not in slot: slot[p] = (free1 if i in G1 else free2).pop(0)
assert len(slot) == 27 and not free1 and not free2
e(f'v_mov_b32 v6, 0')
for i in range(32): e(f'v_writelane_b32 v6, {slot[XPOS[i]]}, {i}')
e(f'''
v_mov_b32 v7, v6
s_nop 1
v_permlane32_swap_b32 v7, v6
v_mul_u32_u24 v7, {ROW}, v7
v_add_u32 v{vXA}, v7, v5
v_lshlrev_b32 v4, 4, v2
v_add_u32 v4, s59, v4
v_add_u32 v4, 224, v4
v_lshl_add_u32 v{vKW}, v3, 3, v4
v_lshl_add_u32 v{vKW2}, v3, 9, v4
v_lshl_add_u32 v{vKW3}, v3, 10, v4
v_lshlrev_b32 v{vUS}, 1, v0
v_add_u32 v{vUS}, {UB}, v{vUS}
v_lshl_add_u32 v{vEW}, v{vLN}, 4, s59
v_add_u32 v{vEW}, {EXO}, v{vEW}
s_lshl_b32 s55, s{sW}, 10
v_lshl_add_u32 v{vER0}, v{vLN}, 4, s55
v_add_u32 v{vER0}, {EXO}, v{vER0}
v_add_u32 v{vER1}, {2*STG}, v{vER0}
v_lshl_add_u32 v{vUL}, v0, 10, s62
''')
e(f'''
v_and_b32 v2, 15, v{vLN}
v_lshrrev_b32 v3, 4, v{vLN}
s_and_b32 s55, s{sW}, 1
v_add_u32 v4, 1, v2
v_lshrrev_b32 v4, 1, v4
v_lshl_add_u32 v4, v3, 2, v4
v_lshlrev_b32 v4, 2, v4
v_and_b32 v5, 1, v2
v_xor_b32 v5, 1, v5
v_mul_u32_u24 v5, {UO}, v5
s_mul_i32 s56, s58, {UCH}
s_lshl_b32 s57, s55, 7
s_add_u32 s56, s56, s57
s_add_u32 s56, s56, {UB}
v_add3_u32 v{vAA}, v4, v5, s56
v_and_b32 v4, 7, v2
v_lshrrev_b32 v5, 3, v2
v_lshlrev_b32 v6, 1, v4
v_sub_u32 v6, v6, v3
v_lshlrev_b32 v6, 4, v6
v_mul_u32_u24 v7, {STG}, v5
s_mul_i32 s56, s58, {2*STG}
s_sub_u32 s56, s56, s57
s_add_u32 s56, s56, {17*16 - 32 - 64}
v_add3_u32 v{vBA}, v6, v7, s56
v_lshlrev_b32 v6, 4, v4
v_lshl_add_u32 v6, v3, 2, v6
v_lshlrev_b32 v{vGL}, 2, v6
s_lshl_b32 s56, s{sW}, 9
v_add_u32 v{vGL}, s56, v{vGL}
v_lshl_add_u32 v6, v5, 1, v6
s_lshl_b32 s56, s{sW}, 17
s_add_u32 s56, s56, s62
v_lshl_add_u32 v{vST}, v6, 10, s56
v_cvt_f32_u32 v{vSG+1}, v5
v_fma_f32 v{vSG}, v{vSG+1}, -2.0, 1.0
v_and_b32 v6, 1, v{vLN}
v_cmp_eq_u32 s[{sODD}:{sODD+1}], 1, v6
s_lshl_b32 s56, s2, 2
s_add_u32 s56, s56, s{sW}
s_lshl_b32 s56, s56, 3
v_mov_b32 v{vGA}, s56
''')
e(f'''
v_mov_b32 v6, 0x3f80
v_mov_b32 v7, 0x3f80
ds_write_b64 v{vSW}, v[6:7]
s_cmp_lg_u32 s{sW}, 0
s_cbranch_scc1 L_nozero
v_lshrrev_b32 v6, 3, v{vLN}
v_and_b32 v6, 3, v6
v_mul_u32_u24 v6, {UO}, v6
v_and_b32 v7, 7, v{vLN}
v_lshl_add_u32 v6, v7, 2, v6
v_add_u32 v6, {UB}, v6
v_mov_b32 v7, 0
ds_write_b32 v6, v7
L_nozero:
s_waitcnt lgkmcnt(0)
s_mul_i32 s{sTAG}, s{sE}, 0x9E3779B1
s_add_u32 s{sTAG}, s{sTAG}, 0x7F4A7C15
s_lshl_b32 s55, s58, 4
s_lshr_b32 s{sLDT}, s{sLDT}, s55
s_lshl_b32 s{sLDT}, s{sLDT}, 16
s_lshr_b32 s{sD}, s{sD}, s55
s_lshl_b32 s{sD}, s{sD}, 16
v_mov_b32 v{vDK}, 0
v_writelane_b32 v{vDK}, s{sD}, 32
''')
vDT, vDTL, vDTR, vDT2 = vKB, vKB + 1, vKB + 2, vKB + 3
e(f'''
v_mov_b32 v{vDT}, s{sLDT}
v_mul_f32 v{vDT}, 0x3fb8aa3b, v{vDT}
v_exp_f32 v{vDT}, v{vDT}
v_mov_b32 v9, s{sTAG}
v_cvt_pk_bf16_f32 v{vDT}, v{vDT}, v{vDT}
v_and_b32 v{vDT}, 0xffff0000, v{vDT}
v_mul_f32 v{vDTL}, 0xbfb8aa3b, v{vDT}
v_mul_f32 v{vDTR}, 0.15915494, v{vDT}
v_add_f32 v{vDT2}, v{vDT}, v{vDT}
''')
e(f'v_dot2_f32_bf16 v2, v{vGX}, v{vGWt}, 0')
for k in range(1, 8): e(f'v_dot2_f32_bf16 v2, v{vGX+k}, v{vGWt+k}, v2')
stamp()
for r in (8, 4, 2, 1): e(f'v_add_f32_dpp v2, v2, v2 row_ror:{r} row_mask:0xf bank_mask:0xf')
e(f'''
v_add_f32_dpp v2, v2, v2 row_bcast:15 row_mask:0xa bank_mask:0xf
v_mul_f32 v2, 0xbfb8aa3b, v2
v_exp_f32 v2, v2
v_add_f32 v2, 1.0, v2
v_rcp_f32 v2, v2
v_mov_b32_dpp v3, v2 row_bcast:31 row_mask:0xc bank_mask:0xf
v_cvt_pk_bf16_f32 v8, v3, v2
s_lshl_b64 exec, 1, 63
buffer_store_dwordx2 v[8:9], v{vGA}, s[36:39], 0 offen sc1
s_mov_b64 exec, -1
s_waitcnt vmcnt(1)
''')
stamp()
def uload(j): return f'buffer_load_dword v{vU+j}, v{vUL}, s[28:31], {sOFF(j)} offen'
for j in range(A.n0): e(uload(j))
def gloads():
    return [f'buffer_load_dwordx4 {vr(vG+4*G,4)}, v{vGL}, s[36:39], 0 offen offset:{2048*G} sc1' if G < 2 else
            f'buffer_load_dwordx4 {vr(vG+4*G,4)}, v{vGL}, s[36:39], s63 offen offset:{2048*(G-2)} sc1' for G in range(4)]
e('s_mov_b32 s63, 4096')
paced = [uload(j) for j in range(A.n0, 8)] + gloads()

b = vKB + 4
A2 = [b, b + 1]; B2 = [b + 2, b + 3]; b += 4
W1 = [b, b + 2]; W8 = [b + 4, b + 6]; Y = [b + 8, b + 10]; X = [b + 12, b + 14]; Z = [b + 16, b + 18]; Z2 = [b + 20, b + 22]; T = [b + 24, b + 26]; b += 28
PK = [b, b + 2, b + 4, b + 6]; b += 8
E_ = [b, b + 1]; TH = [b + 2, b + 3]; RN = [b + 4, b + 5]; b += 6
def unpack(dst0, dst1, src): e(f'v_lshlrev_b32 v{dst0}, 16, v{src}\nv_and_b32 v{dst1}, 0xffff0000, v{src}')
unpack(A2[0], A2[1], vLA)
e(f'''
v_mul_f32 v{A2[0]}, 0x3fb8aa3b, v{A2[0]}
v_mul_f32 v{A2[1]}, 0x3fb8aa3b, v{A2[1]}
v_exp_f32 v{A2[0]}, v{A2[0]}
v_exp_f32 v{A2[1]}, v{A2[1]}
''')
unpack(B2[0], B2[1], vAI)
e(f'v_cvt_pk_bf16_f32 v2, v{A2[0]}, v{A2[1]}')
e(f'v_mul_f32 v{B2[0]}, v{B2[0]}, v{vDTR}\nv_mul_f32 v{B2[1]}, v{B2[1]}, v{vDTR}')
unpack(A2[0], A2[1], 2)
e(f'v_mul_f32 v{A2[0]}, v{A2[0]}, v{vDTL}\nv_mul_f32 v{A2[1]}, v{A2[1]}, v{vDTL}')
def weval(W, p):
    for k in range(2):
        if p == 1:
            e(f'v_exp_f32 v{E_[k]}, v{A2[k]}\nv_rndne_f32 v{RN[k]}, v{B2[k]}\nv_sub_f32 v{TH[k]}, v{B2[k]}, v{RN[k]}')
        else:
            e(f'v_mul_f32 v{E_[k]}, {hex(0x41000000)}, v{A2[k]}\nv_mul_f32 v{TH[k]}, {hex(0x41000000)}, v{B2[k]}')
            e(f'v_exp_f32 v{E_[k]}, v{E_[k]}\nv_rndne_f32 v{RN[k]}, v{TH[k]}\nv_sub_f32 v{TH[k]}, v{TH[k]}, v{RN[k]}')
    for k in range(2): e(f'v_cos_f32 v{W[k]}, v{TH[k]}\nv_sin_f32 v{W[k]+1}, v{TH[k]}')
    if p == 8:
        unpack(X[0], X[1], vCR); unpack(X[0] + 1, X[1] + 1, vCI)
    for k in range(2): e(f'v_mul_f32 v{W[k]}, v{W[k]}, v{E_[k]}\nv_mul_f32 v{W[k]+1}, v{W[k]+1}, v{E_[k]}')
weval(W8, 8)
for k in range(2): e(f'v_mul_f32 v{X[k]}, v{X[k]}, v{vDT2}\nv_mul_f32 v{X[k]+1}, v{X[k]+1}, v{vDT2}')
weval(W1, 1)
pkc = [0]
PACE = [int(x) for x in A.pace.split(',')]
def cmul(R, P, Q):
    for k in range(2): e(f'v_pk_mul_f32 {vr(T[k],2)}, {vr(P[k],2)}, {vr(Q[k],2)} op_sel_hi:[1,0]')
    for k in range(2): e(f'v_pk_fma_f32 {vr(R[k],2)}, {vr(P[k],2)}, {vr(Q[k],2)}, {vr(T[k],2)} op_sel:[1,1,0] op_sel_hi:[0,1,1] neg_lo:[1,0,0]')
def put(R, sl, conj):
    p = PK[pkc[0] % 4]; pkc[0] += 1
    for k in range(2): e(f'v_cvt_pk_bf16_f32 v{p+k}, v{R[k]}, {"-" if conj else ""}v{R[k]+1}')
    e(f'ds_write_b64 v{vSW}, {vr(p,2)} offset:{sl*ROW}')
    if pkc[0] in PACE and paced: e(paced.pop(0))
stamp()
put(W8, 1, True)
cmul(Y, W8, W8); put(Y, 2, True)
for bb in range(3, 32): cmul(Y, Y, W8); put(Y, bb, True)
cmul(Y, Y, W8)
put(X, slot[0], False)
cmul(Z, X, Y); put(Z, slot[256], False)
for base in (256, 512, 768, 1024, 1280, 1536, 1792):
    cmul(Z2, Z, W8); put(Z2, slot[base + 8], False)
    if base < 1792: cmul(Z, Z, Y); put(Z, slot[base + 256], False)
for r in range(1, 8):
    cmul(X, X, W1); put(X, slot[r], False)
    if r in (2, 4, 6):
        cmul(Z, X, Y); put(Z, slot[256 + r], False)
        if r == 4:
            cmul(Z, Z, Y); put(Z, slot[516], False)
            cmul(Z, Z, Y); put(Z, slot[772], False)
stamp()
b = (b + 3) // 4 * 4
RX = [b + 8 * i for i in range(4)]; b += 32
D = b; b += 16
def kread(ms): e(f'ds_read_b128 {vr(RX[ms%4],4)}, v{vXA} offset:{32*ms}\nds_read_b128 {vr(RX[ms%4]+4,4)}, v{vYA} offset:{32*ms}')
def stage(j):
    return [f'ds_write_b16 v{vUS}, v{vU+j} offset:{512*j+32}',
            f'ds_write_b16 v{vUS}, v{vU+j} offset:{512*j+30+UO}',
            f'ds_write_b16_d16_hi v{vUS}, v{vU+j} offset:{512*j+32+UCH}',
            f'ds_write_b16_d16_hi v{vUS}, v{vU+j} offset:{512*j+30+UO+UCH}']
for ms in range(3): kread(ms)
st01 = stage(0) + stage(1) + stage(2) + stage(3)
for ms in range(16):
    if ms + 3 < 16: kread(ms + 3)
    e(f'v_mfma_f32_32x32x16_bf16 {vr(D,16)}, {vr(RX[ms%4],4)}, {vr(RX[ms%4]+4,4)}, {vr(D,16) if ms else 0}')
    if ms >= 12:
        for t in st01[4 * (ms - 12): 4 * (ms - 11)]: e(t)
stamp()
for t in paced: e(t)
P = RX[0]
e(f'''
v_mov_b32 v4, 0
v_mov_b32 v5, 0
v_mov_b32 v6, 0
v_mov_b32 v7, 0
v_lshl_add_u32 v2, v{vLN}, 4, s59
s_mov_b64 exec, 0x3fff
ds_write_b128 v2, v[4:7]
s_mov_b64 exec, -1
v_add_f32 v{D+3}, v{D+3}, v{vDK}
v_cvt_pk_bf16_f32 v{P}, v{D}, v{D+1}
v_cvt_pk_bf16_f32 v{P+1}, v{D+2}, v{D+3}
ds_write_b64 v{vKW}, {vr(P,2)}
v_cvt_pk_bf16_f32 v{P+2}, v{D+4}, v{D+5}
v_cvt_pk_bf16_f32 v{P+3}, v{D+6}, v{D+7}
ds_write_b64 v{vKW}, {vr(P+2,2)} offset:512
v_cvt_pk_bf16_f32 v{P+4}, v{D+10}, v{D+10}
v_cvt_pk_bf16_f32 v{P+5}, v{D+9}, v{D+9}
v_cvt_pk_bf16_f32 v{P+6}, v{D+9}, v{D+8}
v_cvt_pk_bf16_f32 v{P+7}, v{D+8}, v{D+8}
ds_write_b128 v{vKW2}, {vr(P+4,4)} offset:1024
''')
for ee in range(2):
    V0, V8 = D + 12 + 2 * ee, D + 13 + 2 * ee; Q = P + 8 + 4 * ee
    e(f'''
v_cndmask_b32 v2, v{V0}, v{V8}, s[{sODD}:{sODD+1}]
v_cvt_pk_bf16_f32 v{Q}, v{V8}, v{V8}
v_cvt_pk_bf16_f32 v{Q+2}, v{V0}, v{V0}
v_cvt_pk_bf16_f32 v{Q+3}, v{V0}, v{V0}
v_cvt_pk_bf16_f32 v{Q+1}, v{V8}, v2
ds_write_b128 v{vKW3}, {vr(Q,4)} offset:{2048+512*ee}
''')
e('PUBLISH\ns_barrier')
stamp()
if A.dumpk:
    e(f'''
s_lshl_b32 s55, s2, 2
s_add_u32 s55, s55, s{sW}
s_lshl_b32 s55, s55, 12
s_add_u32 s55, s55, 0x100000
v_lshl_add_u32 v2, v{vLN}, 4, s59
v_lshlrev_b32 v3, 4, v{vLN}
''')
    for q in range(4):
        e(f'ds_read_b128 v[4:7], v2 offset:{224+1024*q}\nbuffer_store_dwordx4 v[4:7], v3, s[36:39], s55 offen offset:{1024*q}\ns_waitcnt vmcnt(0)') if False else None

NB = 8
RB = [vKB + 4 * i for i in range(NB)]
vP = vKB + 4 * NB
vH = vP + 16
vWt = vH + 16; vO = vWt + 4; vPK = vO + 4
aA = lambda mu, M: 64 * mu + 4 * M
aC = lambda G, q: 128 + 16 * (G & 1) + 4 * q
mf = []
steps = []
start = {}
for G in range(4):
    start[G] = len(mf)
    seen = set()
    order = [(0, nu) for nu in range(4 * G + 3, -1, -1)] + [(1, nu) for nu in range(4 * G + 4)]
    for mu, nu in order:
        for q in range(4):
            M = 4 * G + q - nu
            if M < 0: continue
            mf.append(dict(G=G, q=q, mu=mu, nu=nu, M=M, first=q not in seen)); seen.add(q)
N = len(mf); start[4] = N
pre = [[] for _ in range(N + 1)]
keys = []
for i, m in enumerate(mf):
    k = (m['G'], m['mu'], m['nu'])
    if not keys or keys[-1][0] != k: keys.append([k, i, i])
    keys[-1][2] = i
breg = {}
for n, (k, f, l) in enumerate(keys):
    r = RB[n % NB]; breg[k] = r
    pos = max(0, f - A.la)
    if n >= NB: pos = max(pos, keys[n - NB][2] + 1)
    pre[pos].append((f, f'ds_read_b128 {vr(r,4)}, v{vBA} offset:{256*k[2] + 64*(1-k[1])}'))
def aread(G, mu, Mq):
    M = 4 * G + Mq; o = 64 * Mq + 16 * mu
    return [f'ds_read2_b32 {ar(aA(mu,M),2)}, v{vAA} offset0:{o} offset1:{o+1}', f'ds_read2_b32 {ar(aA(mu,M)+2,2)}, v{vAA} offset0:{o+2} offset1:{o+3}']
def areads(G):
    r = []
    if G: r.append(f'v_add_u32 v{vAA}, 0x400, v{vAA}')
    for mu in range(2):
        for Mq in range(4): r += aread(G, mu, Mq)
    return r
def exw(G, q): return f'ds_write_b128 v{vEW}, {ar(aC(G,q),4)} offset:{(4*G+q)*1024}'
def exr(G, H):
    r = [f'ds_read_b128 {vr(vP+4*w,4)}, v{vER0 if w < 2 else vER1} offset:{(w&1)*STG + 4096*G}' for w in range(4)]
    for c in range(2):
        for h in range(2): r.append(f'v_pk_add_f32 {vr(H+4*c+2*h,2)}, {vr(vP+8*c+2*h,2)}, {vr(vP+8*c+4+2*h,2)}')
    return r
def mix(G, H):
    g = vG + 4 * G
    r = [f'v_lshlrev_b32 v{vWt}, 16, v{g}', f'v_and_b32 v{vWt+1}, 0xffff0000, v{g}', f'v_lshlrev_b32 v{vWt+2}, 16, v{g+2}', f'v_and_b32 v{vWt+3}, 0xffff0000, v{g+2}']
    for h in range(2): r.append(f'v_pk_fma_f32 {vr(vWt+2*h,2)}, {vr(vWt+2*h,2)}, {vr(vSG,2)}, {vr(vSG,2)} op_sel:[0,0,1] op_sel_hi:[1,0,1]')
    for c in range(2):
        for h in range(2): r.append(f'v_pk_mul_f32 {vr(H+4*c+2*h,2)}, {vr(H+4*c+2*h,2)}, {vr(vWt+2*h,2)}')
    for k in range(2):
        for c in range(2):
            r.append(f'v_add_f32_dpp v{vO+2*k+c}, v{H+4*c+k}, v{H+4*c+k} row_ror:8 row_mask:0xf bank_mask:0x3')
        for c in range(2):
            r.append(f'v_add_f32_dpp v{vO+2*k+c}, v{H+4*c+2+k}, v{H+4*c+2+k} row_ror:8 row_mask:0xf bank_mask:0xc')
    for k in range(2):
        r.append(f'v_cvt_pk_bf16_f32 v{vPK+2*(G&1)+k}, v{vO+2*k}, v{vO+2*k+1}')
    for k in range(2):
        r.append(f'buffer_store_dword v{vPK+2*(G&1)+k}, v{vST}, s[32:35], {sOFF(2*G)} offen' + (f' offset:1024' if k else '') + ' ' + A.stpol)
    return r
def check():
    r = ['s_waitcnt vmcnt(0)', 'L_chk:']
    tags = [vG + 1 + 2 * i for i in range(8)]
    for i, t in enumerate(tags): r.append(f'v_xor_b32 v{vP+i}, s{sTAG}, v{t}')
    r += [f'v_or3_b32 v{vP}, v{vP}, v{vP+1}, v{vP+2}', f'v_or3_b32 v{vP+3}, v{vP+3}, v{vP+4}, v{vP+5}',
          f'v_or3_b32 v{vP}, v{vP}, v{vP+6}, v{vP+7}', f'v_or_b32 v{vP}, v{vP}, v{vP+3}',
          f'v_cmp_ne_u32 vcc, 0, v{vP}', 's_cbranch_vccnz L_slow', 'L_ok:']
    return r
load = [len(p) for p in pre]
def place(seq, at, cap=2):
    i = at
    for t in seq:
        atomic = t if isinstance(t, list) else [t]
        while i < N and load[i] + 1 > cap: i += 1
        for u_ in atomic: pre[i].append((10**6, u_))
        load[i] += len(atomic)
    return i
last = {}
for i, m in enumerate(mf): last[(m['G'], m['q'])] = i
place(areads(0), 0, cap=99) if False else None
a0 = areads(0)
for t in a0[:4]: pre[0].append((-1, t)); load[0] += 1
i = place(a0[4:], 0, cap=4)
i = place(areads(1), i + 1, cap=3)
for q in range(4): place([exw(0, q)], last[(0, q)] + 5, cap=3)
i = start[2]
for q in range(4): i = max(i, place([exw(1, q)], last[(1, q)] + 5, cap=3))
i = place(stage(4) + stage(5), i, cap=3)
i = place([['PUBLISH', 's_barrier']], i)
i = place(areads(2)[:9], i + 1, cap=3)
i = place(exr(0, vH) + exr(1, vH + 8), i, cap=3)
i = place(areads(2)[9:], i, cap=3)
dst = []; stamp(dst)
i = max(i, start[2] + A.posg)
i = place([dst + check()], i, cap=99)
dst = []; stamp(dst)
i = place(mix(0, vH) + mix(1, vH + 8) + dst, i, cap=4)
i = place(stage(6) + stage(7), i, cap=3)
assert i < start[3], (i, start)
i = start[3]
for q in range(4): i = max(i, place([exw(2, q)], last[(2, q)] + 5, cap=3))
i = place([['PUBLISH', 's_barrier']], i)
i = place(exr(2, vH) + mix(2, vH), i + 1, cap=3)
i = place(areads(3), i, cap=3)
assert i < start[3] + 40, (i, start)
for q in range(3): place([exw(3, q)], min(N, last[(3, q)] + 5), cap=3)
for i, m in enumerate(mf):
    for _, t in sorted(pre[i], key=lambda z: z[0]): e(t)
    if i == start[m['G']] and i: stamp()
    c = ar(aC(m['G'], m['q']), 4)
    e(f"v_mfma_f32_16x16x32_bf16 {c}, {ar(aA(m['mu'], m['M']), 4)}, {vr(breg[(m['G'], m['mu'], m['nu'])], 4)}, {0 if m['first'] else c}")
for _, t in pre[N]: e(t)
stamp()
e(exw(3, 3)); e('PUBLISH\ns_barrier')
for t in exr(3, vH) + mix(3, vH): e(t)
stamp()
e(f'''
s_or_b32 s55, s2, s{sW}
s_cmp_lg_u32 s55, 0
s_cbranch_scc1 L_noep
v_mov_b32 v2, s{sTAG}
v_mov_b32 v3, 0x2000
s_mov_b64 exec, 1
buffer_store_dword v2, v3, s[36:39], 0 offen sc1
s_mov_b64 exec, -1
L_noep:
''')
if A.diag:
    e('s_waitcnt vmcnt(0)'); stamp(); e('s_memrealtime s[62:63]\ns_waitcnt lgkmcnt(0)')
    ns = stamp_n[0]
    e(f's_lshl_b32 s55, s2, 2\ns_add_u32 s55, s55, s{sW}\ns_lshl_b32 s55, s55, 7\ns_add_u32 s55, s55, 0x100000\nv_mov_b32 v2, 0')
    for k in range(ns): e(f'v_writelane_b32 v2, s{64+2*k}, {k}')
    e(f'v_writelane_b32 v2, s60, 30\nv_writelane_b32 v2, s62, 31\nv_writelane_b32 v2, s{sCNT}, 29\nv_lshlrev_b32 v3, 2, v{vLN}\ns_lshr_b64 exec, -1, 32\nbuffer_store_dword v2, v3, s[36:39], s55 offen')
for _ in range(A.delay): e('s_sleep 38')
e('L_end:\ns_endpgm')
e(f'''
L_slow:
s_add_u32 s{sCNT}, s{sCNT}, 1
s_cmp_gt_u32 s{sCNT}, 20000
s_cbranch_scc1 L_ok
s_sleep 2
''')
for t in gloads(): e(t)
e('s_waitcnt vmcnt(0)\ns_branch L_chk\nL_codeend:')
idx = next(i for i, x in enumerate(L) if x.text.startswith('s_mov_b32 s28'))
L.insert(idx, Ins(f's_mov_b32 s{sCNT}, 0'))

for x in L:
    if 'L_codeend-L_pc-4' in x.text: x.text = x.text.replace('L_codeend-L_pc-4', 'CODE_BYTES')
ins = finalize(L)
body = emit(ins).replace('CODE_BYTES', 'L_codeend-L_pc-4')
ref = open('gated_mix__ssm_conv_s4d__ssm_conv_s4d__prompt.s.ref').read()
head = ref[:ref.index('; Override launch geometry')]
src = head + f'''; @launch grid=(256,1,1) block=(256,1,1) lds={LDS}
.amdgcn_target "amdgcn-amd-amdhsa--gfx950"
.text
.globl {NAME}
.p2align 8
.type {NAME},@function
{NAME}:
''' + body + f'''.section .rodata,"a"
.p2align 6
.amdhsa_kernel {NAME}
  .amdhsa_next_free_vgpr 416
  .amdhsa_next_free_sgpr 102
  .amdhsa_accum_offset 256
  .amdhsa_group_segment_fixed_size 0
  .amdhsa_kernarg_size 144
  .amdhsa_user_sgpr_count 2
  .amdhsa_user_sgpr_kernarg_segment_ptr 1
  .amdhsa_system_sgpr_workgroup_id_x 1
.end_amdhsa_kernel
'''
open(A.o, 'w').write(src)
print('max vgpr', max(r[1] for x in ins for r in (x.rd | x.wr) if r[0] == 'v'), 'starts', start)
```

```python
import sys, argparse
from asmlib import *
ap = argparse.ArgumentParser()
ap.add_argument('-o', default='gated_mix__ssm_conv_s4d__ssm_conv_s4d__prompt.s')
ap.add_argument('--diag', type=int, default=0)
ap.add_argument('--posg', type=int, default=30)
ap.add_argument('--la', type=int, default=6)
ap.add_argument('--nocodepf', type=int, default=0)
ap.add_argument('--n0', type=int, default=5)
ap.add_argument('--pace', default='8,26,44')
ap.add_argument('--lin', type=int, default=0)
ap.add_argument('--noupf', type=int, default=0)
ap.add_argument('--stpol', default='')
ap.add_argument('--delay', type=int, default=0)
ap.add_argument('--double', type=int, default=0)
ap.add_argument('--dumpk', type=int, default=0)
A = ap.parse_args()

NAME = 'gated_mix__ssm_conv_s4d__ssm_conv_s4d__prompt_kernel'
STG = 31232; ROW = 528; UB = 4 * STG; UCH = 8320; UO = 4160; LDS = UB + 2 * UCH
EXO = 4352
L = []
def e(t):
    for line in t.strip().split('\n'):
        line = line.strip()
        if line: L.append(Ins(line))
def vr(b, n): return f'v[{b}:{b+n-1}]' if n > 1 else f'v{b}'
def ar(b, n): return f'a[{b}:{b+n-1}]'
stamp_n = [0]
def stamp(dst=None):
    if A.double:
        stamp_n[0] += 1
        if stamp_n[0] == A.double - 1:
            if dst is None: e('s_memrealtime s[64:65]')
            else: dst.append('s_memrealtime s[64:65]')
        return
    if not A.diag: return None
    k = 64 + 2 * stamp_n[0]; stamp_n[0] += 1
    t = f's_memtime s[{k}:{k+1}]'
    if dst is None: e(t)
    else: dst.append(t)

vTID, vLN = 0, 1
vT = [2, 3, 4, 5, 6, 7, 8, 9]
vSW, vXA, vYA, vKW, vKW2, vKW3, vUS, vAA, vBA, vEW, vER0, vER1, vST, vGL, vUL, vDK = range(10, 26)
vSG = 26
vU = 28
vG = 36
vGX, vGWt = 52, 60
vPF = 68
vCP = 76
vLA, vAI, vCR, vCI = 77, 78, 79, 80
vGA = 81
vKB = 84
sW, sTAG, sD, sLDT, sE = 3, 48, 49, 50, 51
sODD = 52
sCNT = 54
sOFF = lambda j: '0' if j == 0 else f's{40+j}'

if A.diag or A.double: e('s_memrealtime s[60:61]')
stamp()
e(f'''
s_cmp_ge_u32 s2, 256
s_cbranch_scc1 L_end
v_lshrrev_b32 v2, 6, v0
s_load_dwordx2 s[4:5], s[0:1], 0
s_load_dwordx8 s[20:27], s[0:1], 112
v_readfirstlane_b32 s{sW}, v2
v_and_b32 v{vLN}, 63, v0
''')
e(f'''
s_and_b32 s6, s{sW}, 1
s_mul_i32 s6, s6, 56
s_add_u32 s7, s6, 40
s_add_u32 s6, s6, 8
s_load_dwordx8 s[8:15], s[0:1], s6
s_load_dwordx4 s[16:19], s[0:1], s7
''')
if not A.nocodepf:
    e(f'''
s_getpc_b64 s[56:57]
L_pc:
s_lshr_b32 s55, s2, 3
s_and_b32 s55, s55, 3
s_lshl_b32 s55, s55, 12
v_lshl_add_u32 v3, v{vLN}, 6, s55
v_min_u32 v3, L_codeend-L_pc-4, v3
v_mov_b32 v5, s57
v_add_co_u32 v4, vcc, s56, v3
v_addc_co_u32 v5, vcc, 0, v5, vcc
s_cmp_lg_u32 s{sW}, 0
s_cbranch_scc1 L_nocp
global_load_dword v{vCP}, v[4:5], off
L_nocp:
''')
e(f'''
{'s_lshr_b32 s55, s2, 5' if A.lin else 's_and_b32 s55, s2, 7'}
{'s_and_b32 s58, s2, 31' if A.lin else 's_lshr_b32 s58, s2, 3'}
s_lshl_b32 s59, s55, 7
s_lshl_b32 s62, s58, 2
s_add_u32 s62, s62, s59
s_lshl_b32 s63, s58, 16
s_add_u32 s63, s63, s59
''')
e(f'''
v_lshrrev_b32 v2, 5, v0
v_and_b32 v3, 31, v0
v_lshlrev_b32 v3, 4, v3
s_lshl_b32 s59, s2, 13
v_lshl_add_u32 v2, v2, 10, s59
v_add_u32 v2, v2, v3
v_lshrrev_b32 v6, 3, v0
v_and_b32 v7, 7, v0
v_lshlrev_b32 v7, 4, v7
v_lshl_add_u32 v6, v6, 10, s63
v_add_u32 v6, v6, v7
v_add_u32 v7, 0x8000, v6
s_lshr_b32 s58, s{sW}, 1
s_lshr_b32 s59, s62, 1
s_add_u32 s59, s59, s58
s_lshl_b32 s59, s59, 8
v_lshl_add_u32 v8, v{vLN}, 2, s59
''')
e(f'''
s_waitcnt lgkmcnt(0)
global_load_dwordx4 {vr(vGX,4)}, v2, s[4:5]
global_load_dwordx4 {vr(vGX+4,4)}, v2, s[4:5] offset:512
global_load_dwordx4 {vr(vGWt,4)}, v3, s[20:21]
global_load_dwordx4 {vr(vGWt+4,4)}, v3, s[20:21] offset:512
s_load_dword s{sE}, s[26:27], 8192
s_load_dword s{sLDT}, s[16:17], s62
s_load_dword s{sD}, s[18:19], s62
global_load_dword v{vLA}, v8, s[8:9]
global_load_dword v{vAI}, v8, s[10:11]
global_load_dword v{vCR}, v8, s[12:13]
global_load_dword v{vCI}, v8, s[14:15]
{'' if A.noupf else f'global_load_dwordx4 {vr(vPF,4)}, v6, s[4:5]'}
{'' if A.noupf else f'global_load_dwordx4 {vr(vPF+4,4)}, v7, s[4:5]'}
''')
stamp()
e(f'''
s_mov_b32 s28, s4
s_mov_b32 s29, s5
s_mov_b32 s30, 0x200000
s_mov_b32 s31, 0x20000
s_mov_b32 s32, s22
s_mov_b32 s33, s23
s_mov_b32 s34, 0x200000
s_mov_b32 s35, 0x20000
s_mov_b32 s36, s26
s_mov_b32 s37, s27
s_mov_b32 s38, {0x200000 if (A.diag or A.dumpk) else 8256}
s_mov_b32 s39, 0x20000
''')
for j in range(1, 8): e(f's_mov_b32 s{40+j}, {j * 262144}')
e(f'''
s_mul_i32 s59, s{sW}, {STG}
v_lshl_add_u32 v{vSW}, v{vLN}, 3, s59
v_and_b32 v2, 31, v{vLN}
v_lshrrev_b32 v3, 5, v{vLN}
v_mul_u32_u24 v4, {ROW}, v2
v_lshl_add_u32 v5, v3, 4, s59
v_add_u32 v{vYA}, v4, v5
''')
XPOS = [7,6,5,4,3,2,1,0] + [256+x for x in (8,6,4,4,4,2,0,0)] + [512,516,520,520,768,772,776,776] + [1024,1032,1280,1288,1536,1544,1792,1800]
G1 = [0,1,2,3,12,13,14,15,20,21,22,23,24,25,26,27]
slot = {260: 43}
free1 = [s for s in range(32, 46) if s != 43]; free2 = list(range(46, 59))
for i in range(32):
    p = XPOS[i]
    if p not in slot: slot[p] = (free1 if i in G1 else free2).pop(0)
assert len(slot) == 27 and not free1 and not free2
e(f'v_mov_b32 v6, 0')
for i in range(32): e(f'v_writelane_b32 v6, {slot[XPOS[i]]}, {i}')
e(f'''
v_mov_b32 v7, v6
s_nop 1
v_permlane32_swap_b32 v7, v6
v_mul_u32_u24 v7, {ROW}, v7
v_add_u32 v{vXA}, v7, v5
v_lshlrev_b32 v4, 4, v2
v_add_u32 v4, s59, v4
v_add_u32 v4, 224, v4
v_lshl_add_u32 v{vKW}, v3, 3, v4
v_lshl_add_u32 v{vKW2}, v3, 9, v4
v_lshl_add_u32 v{vKW3}, v3, 10, v4
v_lshlrev_b32 v{vUS}, 1, v0
v_add_u32 v{vUS}, {UB}, v{vUS}
v_lshl_add_u32 v{vEW}, v{vLN}, 4, s59
v_add_u32 v{vEW}, {EXO}, v{vEW}
s_lshl_b32 s55, s{sW}, 10
v_lshl_add_u32 v{vER0}, v{vLN}, 4, s55
v_add_u32 v{vER0}, {EXO}, v{vER0}
v_add_u32 v{vER1}, {2*STG}, v{vER0}
v_lshl_add_u32 v{vUL}, v0, 10, s62
''')
e(f'''
v_and_b32 v2, 15, v{vLN}
v_lshrrev_b32 v3, 4, v{vLN}
s_and_b32 s55, s{sW}, 1
v_add_u32 v4, 1, v2
v_lshrrev_b32 v4, 1, v4
v_lshl_add_u32 v4, v3, 2, v4
v_lshlrev_b32 v4, 2, v4
v_and_b32 v5, 1, v2
v_xor_b32 v5, 1, v5
v_mul_u32_u24 v5, {UO}, v5
s_mul_i32 s56, s58, {UCH}
s_lshl_b32 s57, s55, 7
s_add_u32 s56, s56, s57
s_add_u32 s56, s56, {UB}
v_add3_u32 v{vAA}, v4, v5, s56
v_and_b32 v4, 7, v2
v_lshrrev_b32 v5, 3, v2
v_lshlrev_b32 v6, 1, v4
v_sub_u32 v6, v6, v3
v_lshlrev_b32 v6, 4, v6
v_mul_u32_u24 v7, {STG}, v5
s_mul_i32 s56, s58, {2*STG}
s_sub_u32 s56, s56, s57
s_add_u32 s56, s56, {17*16 - 32 - 64}
v_add3_u32 v{vBA}, v6, v7, s56
v_lshlrev_b32 v6, 4, v4
v_lshl_add_u32 v6, v3, 2, v6
v_lshlrev_b32 v{vGL}, 2, v6
s_lshl_b32 s56, s{sW}, 9
v_add_u32 v{vGL}, s56, v{vGL}
v_lshl_add_u32 v6, v5, 1, v6
s_lshl_b32 s56, s{sW}, 17
s_add_u32 s56, s56, s62
v_lshl_add_u32 v{vST}, v6, 10, s56
v_cvt_f32_u32 v{vSG+1}, v5
v_fma_f32 v{vSG}, v{vSG+1}, -2.0, 1.0
v_and_b32 v6, 1, v{vLN}
v_cmp_eq_u32 s[{sODD}:{sODD+1}], 1, v6
s_lshl_b32 s56, s2, 2
s_add_u32 s56, s56, s{sW}
s_lshl_b32 s56, s56, 3
v_mov_b32 v{vGA}, s56
''')
e(f'''
v_mov_b32 v6, 0x3f80
v_mov_b32 v7, 0x3f80
ds_write_b64 v{vSW}, v[6:7]
s_cmp_lg_u32 s{sW}, 0
s_cbranch_scc1 L_nozero
v_lshrrev_b32 v6, 3, v{vLN}
v_and_b32 v6, 3, v6
v_mul_u32_u24 v6, {UO}, v6
v_and_b32 v7, 7, v{vLN}
v_lshl_add_u32 v6, v7, 2, v6
v_add_u32 v6, {UB}, v6
v_mov_b32 v7, 0
ds_write_b32 v6, v7
L_nozero:
s_waitcnt lgkmcnt(0)
s_mul_i32 s{sTAG}, s{sE}, 0x9E3779B1
s_add_u32 s{sTAG}, s{sTAG}, 0x7F4A7C15
s_lshl_b32 s55, s58, 4
s_lshr_b32 s{sLDT}, s{sLDT}, s55
s_lshl_b32 s{sLDT}, s{sLDT}, 16
s_lshr_b32 s{sD}, s{sD}, s55
s_lshl_b32 s{sD}, s{sD}, 16
v_mov_b32 v{vDK}, 0
v_writelane_b32 v{vDK}, s{sD}, 32
''')
vDT, vDTL, vDTR, vDT2 = vKB, vKB + 1, vKB + 2, vKB + 3
e(f'''
v_mov_b32 v{vDT}, s{sLDT}
v_mul_f32 v{vDT}, 0x3fb8aa3b, v{vDT}
v_exp_f32 v{vDT}, v{vDT}
v_mov_b32 v9, s{sTAG}
v_cvt_pk_bf16_f32 v{vDT}, v{vDT}, v{vDT}
v_and_b32 v{vDT}, 0xffff0000, v{vDT}
v_mul_f32 v{vDTL}, 0xbfb8aa3b, v{vDT}
v_mul_f32 v{vDTR}, 0.15915494, v{vDT}
v_add_f32 v{vDT2}, v{vDT}, v{vDT}
''')
e(f'v_dot2_f32_bf16 v2, v{vGX}, v{vGWt}, 0')
for k in range(1, 8): e(f'v_dot2_f32_bf16 v2, v{vGX+k}, v{vGWt+k}, v2')
stamp()
for r in (8, 4, 2, 1): e(f'v_add_f32_dpp v2, v2, v2 row_ror:{r} row_mask:0xf bank_mask:0xf')
e(f'''
v_add_f32_dpp v2, v2, v2 row_bcast:15 row_mask:0xa bank_mask:0xf
v_mul_f32 v2, 0xbfb8aa3b, v2
v_exp_f32 v2, v2
v_add_f32 v2, 1.0, v2
v_rcp_f32 v2, v2
v_mov_b32_dpp v3, v2 row_bcast:31 row_mask:0xc bank_mask:0xf
v_cvt_pk_bf16_f32 v8, v3, v2
s_lshl_b64 exec, 1, 63
buffer_store_dwordx2 v[8:9], v{vGA}, s[36:39], 0 offen sc1
s_mov_b64 exec, -1
s_waitcnt vmcnt(1)
''')
stamp()
def uload(j): return f'buffer_load_dword v{vU+j}, v{vUL}, s[28:31], {sOFF(j)} offen'
for j in range(A.n0): e(uload(j))
def gloads():
    return [f'buffer_load_dwordx4 {vr(vG+4*G,4)}, v{vGL}, s[36:39], 0 offen offset:{2048*G} sc1' if G < 2 else
            f'buffer_load_dwordx4 {vr(vG+4*G,4)}, v{vGL}, s[36:39], s63 offen offset:{2048*(G-2)} sc1' for G in range(4)]
e('s_mov_b32 s63, 4096')
paced = [uload(j) for j in range(A.n0, 8)] + gloads()

b = vKB + 4
A2 = [b, b + 1]; B2 = [b + 2, b + 3]; b += 4
W1 = [b, b + 2]; W8 = [b + 4, b + 6]; Y = [b + 8, b + 10]; X = [b + 12, b + 14]; Z = [b + 16, b + 18]; Z2 = [b + 20, b + 22]; T = [b + 24, b + 26]; b += 28
PK = [b, b + 2, b + 4, b + 6]; b += 8
E_ = [b, b + 1]; TH = [b + 2, b + 3]; RN = [b + 4, b + 5]; b += 6
def unpack(dst0, dst1, src): e(f'v_lshlrev_b32 v{dst0}, 16, v{src}\nv_and_b32 v{dst1}, 0xffff0000, v{src}')
unpack(A2[0], A2[1], vLA)
e(f'''
v_mul_f32 v{A2[0]}, 0x3fb8aa3b, v{A2[0]}
v_mul_f32 v{A2[1]}, 0x3fb8aa3b, v{A2[1]}
v_exp_f32 v{A2[0]}, v{A2[0]}
v_exp_f32 v{A2[1]}, v{A2[1]}
''')
unpack(B2[0], B2[1], vAI)
e(f'v_cvt_pk_bf16_f32 v2, v{A2[0]}, v{A2[1]}')
e(f'v_mul_f32 v{B2[0]}, v{B2[0]}, v{vDTR}\nv_mul_f32 v{B2[1]}, v{B2[1]}, v{vDTR}')
unpack(A2[0], A2[1], 2)
e(f'v_mul_f32 v{A2[0]}, v{A2[0]}, v{vDTL}\nv_mul_f32 v{A2[1]}, v{A2[1]}, v{vDTL}')
def weval(W, p):
    for k in range(2):
        if p == 1:
            e(f'v_exp_f32 v{E_[k]}, v{A2[k]}\nv_rndne_f32 v{RN[k]}, v{B2[k]}\nv_sub_f32 v{TH[k]}, v{B2[k]}, v{RN[k]}')
        else:
            e(f'v_mul_f32 v{E_[k]}, {hex(0x41000000)}, v{A2[k]}\nv_mul_f32 v{TH[k]}, {hex(0x41000000)}, v{B2[k]}')
            e(f'v_exp_f32 v{E_[k]}, v{E_[k]}\nv_rndne_f32 v{RN[k]}, v{TH[k]}\nv_sub_f32 v{TH[k]}, v{TH[k]}, v{RN[k]}')
    for k in range(2): e(f'v_cos_f32 v{W[k]}, v{TH[k]}\nv_sin_f32 v{W[k]+1}, v{TH[k]}')
    if p == 8:
        unpack(X[0], X[1], vCR); unpack(X[0] + 1, X[1] + 1, vCI)
    for k in range(2): e(f'v_mul_f32 v{W[k]}, v{W[k]}, v{E_[k]}\nv_mul_f32 v{W[k]+1}, v{W[k]+1}, v{E_[k]}')
weval(W8, 8)
for k in range(2): e(f'v_mul_f32 v{X[k]}, v{X[k]}, v{vDT2}\nv_mul_f32 v{X[k]+1}, v{X[k]+1}, v{vDT2}')
weval(W1, 1)
pkc = [0]
PACE = [int(x) for x in A.pace.split(',')]
def cmul(R, P, Q):
    for k in range(2): e(f'v_pk_mul_f32 {vr(T[k],2)}, {vr(P[k],2)}, {vr(Q[k],2)} op_sel_hi:[1,0]')
    for k in range(2): e(f'v_pk_fma_f32 {vr(R[k],2)}, {vr(P[k],2)}, {vr(Q[k],2)}, {vr(T[k],2)} op_sel:[1,1,0] op_sel_hi:[0,1,1] neg_lo:[1,0,0]')
def put(R, sl, conj):
    p = PK[pkc[0] % 4]; pkc[0] += 1
    for k in range(2): e(f'v_cvt_pk_bf16_f32 v{p+k}, v{R[k]}, {"-" if conj else ""}v{R[k]+1}')
    e(f'ds_write_b64 v{vSW}, {vr(p,2)} offset:{sl*ROW}')
    if pkc[0] in PACE and paced: e(paced.pop(0))
stamp()
put(W8, 1, True)
cmul(Y, W8, W8); put(Y, 2, True)
for bb in range(3, 32): cmul(Y, Y, W8); put(Y, bb, True)
cmul(Y, Y, W8)
put(X, slot[0], False)
cmul(Z, X, Y); put(Z, slot[256], False)
for base in (256, 512, 768, 1024, 1280, 1536, 1792):
    cmul(Z2, Z, W8); put(Z2, slot[base + 8], False)
    if base < 1792: cmul(Z, Z, Y); put(Z, slot[base + 256], False)
for r in range(1, 8):
    cmul(X, X, W1); put(X, slot[r], False)
    if r in (2, 4, 6):
        cmul(Z, X, Y); put(Z, slot[256 + r], False)
        if r == 4:
            cmul(Z, Z, Y); put(Z, slot[516], False)
            cmul(Z, Z, Y); put(Z, slot[772], False)
stamp()
b = (b + 3) // 4 * 4
RX = [b + 8 * i for i in range(4)]; b += 32
D = b; b += 16
def kread(ms): e(f'ds_read_b128 {vr(RX[ms%4],4)}, v{vXA} offset:{32*ms}\nds_read_b128 {vr(RX[ms%4]+4,4)}, v{vYA} offset:{32*ms}')
def stage(j):
    return [f'ds_write_b16 v{vUS}, v{vU+j} offset:{512*j+32}',
            f'ds_write_b16 v{vUS}, v{vU+j} offset:{512*j+30+UO}',
            f'ds_write_b16_d16_hi v{vUS}, v{vU+j} offset:{512*j+32+UCH}',
            f'ds_write_b16_d16_hi v{vUS}, v{vU+j} offset:{512*j+30+UO+UCH}']
for ms in range(3): kread(ms)
st01 = stage(0) + stage(1) + stage(2) + stage(3)
for ms in range(16):
    if ms + 3 < 16: kread(ms + 3)
    e(f'v_mfma_f32_32x32x16_bf16 {vr(D,16)}, {vr(RX[ms%4],4)}, {vr(RX[ms%4]+4,4)}, {vr(D,16) if ms else 0}')
    if ms >= 12:
        for t in st01[4 * (ms - 12): 4 * (ms - 11)]: e(t)
stamp()
for t in paced: e(t)
P = RX[0]
e(f'''
v_mov_b32 v4, 0
v_mov_b32 v5, 0
v_mov_b32 v6, 0
v_mov_b32 v7, 0
v_lshl_add_u32 v2, v{vLN}, 4, s59
s_mov_b64 exec, 0x3fff
ds_write_b128 v2, v[4:7]
s_mov_b64 exec, -1
v_add_f32 v{D+3}, v{D+3}, v{vDK}
v_cvt_pk_bf16_f32 v{P}, v{D}, v{D+1}
v_cvt_pk_bf16_f32 v{P+1}, v{D+2}, v{D+3}
ds_write_b64 v{vKW}, {vr(P,2)}
v_cvt_pk_bf16_f32 v{P+2}, v{D+4}, v{D+5}
v_cvt_pk_bf16_f32 v{P+3}, v{D+6}, v{D+7}
ds_write_b64 v{vKW}, {vr(P+2,2)} offset:512
v_cvt_pk_bf16_f32 v{P+4}, v{D+10}, v{D+10}
v_cvt_pk_bf16_f32 v{P+5}, v{D+9}, v{D+9}
v_cvt_pk_bf16_f32 v{P+6}, v{D+9}, v{D+8}
v_cvt_pk_bf16_f32 v{P+7}, v{D+8}, v{D+8}
ds_write_b128 v{vKW2}, {vr(P+4,4)} offset:1024
''')
for ee in range(2):
    V0, V8 = D + 12 + 2 * ee, D + 13 + 2 * ee; Q = P + 8 + 4 * ee
    e(f'''
v_cndmask_b32 v2, v{V0}, v{V8}, s[{sODD}:{sODD+1}]
v_cvt_pk_bf16_f32 v{Q}, v{V8}, v{V8}
v_cvt_pk_bf16_f32 v{Q+2}, v{V0}, v{V0}
v_cvt_pk_bf16_f32 v{Q+3}, v{V0}, v{V0}
v_cvt_pk_bf16_f32 v{Q+1}, v{V8}, v2
ds_write_b128 v{vKW3}, {vr(Q,4)} offset:{2048+512*ee}
''')
e('PUBLISH\ns_barrier')
stamp()
if A.dumpk:
    e(f'''
s_lshl_b32 s55, s2, 2
s_add_u32 s55, s55, s{sW}
s_lshl_b32 s55, s55, 12
s_add_u32 s55, s55, 0x100000
v_lshl_add_u32 v2, v{vLN}, 4, s59
v_lshlrev_b32 v3, 4, v{vLN}
''')
    for q in range(4):
        e(f'ds_read_b128 v[4:7], v2 offset:{224+1024*q}\nbuffer_store_dwordx4 v[4:7], v3, s[36:39], s55 offen offset:{1024*q}\ns_waitcnt vmcnt(0)') if False else None

NB = 8
RB = [vKB + 4 * i for i in range(NB)]
vP = vKB + 4 * NB
vH = vP + 16
vWt = vH + 16; vO = vWt + 4; vPK = vO + 4
aA = lambda mu, M: 64 * mu + 4 * M
aC = lambda G, q: 128 + 16 * (G & 1) + 4 * q
mf = []
steps = []
start = {}
for G in range(4):
    start[G] = len(mf)
    seen = set()
    order = [(0, nu) for nu in range(4 * G + 3, -1, -1)] + [(1, nu) for nu in range(4 * G + 4)]
    for mu, nu in order:
        for q in range(4):
            M = 4 * G + q - nu
            if M < 0: continue
            mf.append(dict(G=G, q=q, mu=mu, nu=nu, M=M, first=q not in seen)); seen.add(q)
N = len(mf); start[4] = N
pre = [[] for _ in range(N + 1)]
keys = []
for i, m in enumerate(mf):
    k = (m['G'], m['mu'], m['nu'])
    if not keys or keys[-1][0] != k: keys.append([k, i, i])
    keys[-1][2] = i
breg = {}
for n, (k, f, l) in enumerate(keys):
    r = RB[n % NB]; breg[k] = r
    pos = max(0, f - A.la)
    if n >= NB: pos = max(pos, keys[n - NB][2] + 1)
    pre[pos].append((f, f'ds_read_b128 {vr(r,4)}, v{vBA} offset:{256*k[2] + 64*(1-k[1])}'))
def aread(G, mu, Mq):
    M = 4 * G + Mq; o = 64 * Mq + 16 * mu
    return [f'ds_read2_b32 {ar(aA(mu,M),2)}, v{vAA} offset0:{o} offset1:{o+1}', f'ds_read2_b32 {ar(aA(mu,M)+2,2)}, v{vAA} offset0:{o+2} offset1:{o+3}']
def areads(G):
    r = []
    if G: r.append(f'v_add_u32 v{vAA}, 0x400, v{vAA}')
    for mu in range(2):
        for Mq in range(4): r += aread(G, mu, Mq)
    return r
def exw(G, q): return f'ds_write_b128 v{vEW}, {ar(aC(G,q),4)} offset:{(4*G+q)*1024}'
def exr(G, H):
    r = [f'ds_read_b128 {vr(vP+4*w,4)}, v{vER0 if w < 2 else vER1} offset:{(w&1)*STG + 4096*G}' for w in range(4)]
    for c in range(2):
        for h in range(2): r.append(f'v_pk_add_f32 {vr(H+4*c+2*h,2)}, {vr(vP+8*c+2*h,2)}, {vr(vP+8*c+4+2*h,2)}')
    return r
def mix(G, H):
    g = vG + 4 * G
    r = [f'v_lshlrev_b32 v{vWt}, 16, v{g}', f'v_and_b32 v{vWt+1}, 0xffff0000, v{g}', f'v_lshlrev_b32 v{vWt+2}, 16, v{g+2}', f'v_and_b32 v{vWt+3}, 0xffff0000, v{g+2}']
    for h in range(2): r.append(f'v_pk_fma_f32 {vr(vWt+2*h,2)}, {vr(vWt+2*h,2)}, {vr(vSG,2)}, {vr(vSG,2)} op_sel:[0,0,1] op_sel_hi:[1,0,1]')
    for c in range(2):
        for h in range(2): r.append(f'v_pk_mul_f32 {vr(H+4*c+2*h,2)}, {vr(H+4*c+2*h,2)}, {vr(vWt+2*h,2)}')
    for k in range(2):
        for c in range(2):
            r.append(f'v_add_f32_dpp v{vO+2*k+c}, v{H+4*c+k}, v{H+4*c+k} row_ror:8 row_mask:0xf bank_mask:0x3')
        for c in range(2):
            r.append(f'v_add_f32_dpp v{vO+2*k+c}, v{H+4*c+2+k}, v{H+4*c+2+k} row_ror:8 row_mask:0xf bank_mask:0xc')
    for k in range(2):
        r.append(f'v_cvt_pk_bf16_f32 v{vPK+2*(G&1)+k}, v{vO+2*k}, v{vO+2*k+1}')
    for k in range(2):
        r.append(f'buffer_store_dword v{vPK+2*(G&1)+k}, v{vST}, s[32:35], {sOFF(2*G)} offen' + (f' offset:1024' if k else '') + ' ' + A.stpol)
    return r
def check():
    r = ['s_waitcnt vmcnt(0)', 'L_chk:']
    tags = [vG + 1 + 2 * i for i in range(8)]
    for i, t in enumerate(tags): r.append(f'v_xor_b32 v{vP+i}, s{sTAG}, v{t}')
    r += [f'v_or3_b32 v{vP}, v{vP}, v{vP+1}, v{vP+2}', f'v_or3_b32 v{vP+3}, v{vP+3}, v{vP+4}, v{vP+5}',
          f'v_or3_b32 v{vP}, v{vP}, v{vP+6}, v{vP+7}', f'v_or_b32 v{vP}, v{vP}, v{vP+3}',
          f'v_cmp_ne_u32 vcc, 0, v{vP}', 's_cbranch_vccnz L_slow', 'L_ok:']
    return r
load = [len(p) for p in pre]
def place(seq, at, cap=2):
    i = at
    for t in seq:
        atomic = t if isinstance(t, list) else [t]
        while i < N and load[i] + 1 > cap: i += 1
        for u_ in atomic: pre[i].append((10**6, u_))
        load[i] += len(atomic)
    return i
last = {}
for i, m in enumerate(mf): last[(m['G'], m['q'])] = i
place(areads(0), 0, cap=99) if False else None
a0 = areads(0)
for t in a0[:4]: pre[0].append((-1, t)); load[0] += 1
i = place(a0[4:], 0, cap=4)
i = place(areads(1), i + 1, cap=3)
for q in range(4): place([exw(0, q)], last[(0, q)] + 5, cap=3)
i = start[2]
for q in range(4): i = max(i, place([exw(1, q)], last[(1, q)] + 5, cap=3))
i = place(stage(4) + stage(5), i, cap=3)
i = place([['PUBLISH', 's_barrier']], i)
i = place(areads(2)[:9], i + 1, cap=3)
i = place(exr(0, vH) + exr(1, vH + 8), i, cap=3)
i = place(areads(2)[9:], i, cap=3)
dst = []; stamp(dst)
i = max(i, start[2] + A.posg)
i = place([dst + check()], i, cap=99)
dst = []; stamp(dst)
i = place(mix(0, vH) + mix(1, vH + 8) + dst, i, cap=4)
i = place(stage(6) + stage(7), i, cap=3)
assert i < start[3], (i, start)
i = start[3]
for q in range(4): i = max(i, place([exw(2, q)], last[(2, q)] + 5, cap=3))
i = place([['PUBLISH', 's_barrier']], i)
i = place(exr(2, vH) + mix(2, vH), i + 1, cap=3)
i = place(areads(3), i, cap=3)
assert i < start[3] + 40, (i, start)
for q in range(3): place([exw(3, q)], min(N, last[(3, q)] + 5), cap=3)
for i, m in enumerate(mf):
    for _, t in sorted(pre[i], key=lambda z: z[0]): e(t)
    if i == start[m['G']] and i: stamp()
    c = ar(aC(m['G'], m['q']), 4)
    e(f"v_mfma_f32_16x16x32_bf16 {c}, {ar(aA(m['mu'], m['M']), 4)}, {vr(breg[(m['G'], m['mu'], m['nu'])], 4)}, {0 if m['first'] else c}")
for _, t in pre[N]: e(t)
stamp()
e(exw(3, 3)); e('PUBLISH\ns_barrier')
for t in exr(3, vH) + mix(3, vH): e(t)
stamp()
e(f'''
s_or_b32 s55, s2, s{sW}
s_cmp_lg_u32 s55, 0
s_cbranch_scc1 L_noep
v_mov_b32 v2, s{sTAG}
v_mov_b32 v3, 0x2000
s_mov_b64 exec, 1
buffer_store_dword v2, v3, s[36:39], 0 offen sc1
s_mov_b64 exec, -1
L_noep:
''')
if A.diag:
    e('s_waitcnt vmcnt(0)'); stamp(); e('s_memrealtime s[62:63]\ns_waitcnt lgkmcnt(0)')
    ns = stamp_n[0]
    e(f's_lshl_b32 s55, s2, 2\ns_add_u32 s55, s55, s{sW}\ns_lshl_b32 s55, s55, 7\ns_add_u32 s55, s55, 0x100000\nv_mov_b32 v2, 0')
    for k in range(ns): e(f'v_writelane_b32 v2, s{64+2*k}, {k}')
    e(f'v_writelane_b32 v2, s60, 30\nv_writelane_b32 v2, s62, 31\nv_writelane_b32 v2, s{sCNT}, 29\nv_lshlrev_b32 v3, 2, v{vLN}\ns_lshr_b64 exec, -1, 32\nbuffer_store_dword v2, v3, s[36:39], s55 offen')
if A.double:
    e('s_waitcnt vmcnt(0)')
    if A.double == 1: e('s_memrealtime s[64:65]')
    e('''s_memrealtime s[66:67]
s_waitcnt lgkmcnt(0)
s_sub_u32 s64, s64, s60
s_add_u32 s64, s64, s66
L_dbl:
s_memrealtime s[66:67]
s_waitcnt lgkmcnt(0)
s_sub_u32 s66, s66, s64
s_cmp_lt_i32 s66, 0
s_cbranch_scc1 L_dbl''')
for _ in range(A.delay): e('s_sleep 38')
e('L_end:\ns_endpgm')
e(f'''
L_slow:
s_add_u32 s{sCNT}, s{sCNT}, 1
s_cmp_gt_u32 s{sCNT}, 20000
s_cbranch_scc1 L_ok
s_sleep 2
''')
for t in gloads(): e(t)
e('s_waitcnt vmcnt(0)\ns_branch L_chk\nL_codeend:')
idx = next(i for i, x in enumerate(L) if x.text.startswith('s_mov_b32 s28'))
L.insert(idx, Ins(f's_mov_b32 s{sCNT}, 0'))

for x in L:
    if 'L_codeend-L_pc-4' in x.text: x.text = x.text.replace('L_codeend-L_pc-4', 'CODE_BYTES')
ins = finalize(L)
body = emit(ins).replace('CODE_BYTES', 'L_codeend-L_pc-4')
ref = open('gated_mix__ssm_conv_s4d__ssm_conv_s4d__prompt.s.ref').read()
head = ref[:ref.index('; Override launch geometry')]
src = head + f'''; @launch grid=(256,1,1) block=(256,1,1) lds={LDS}
.amdgcn_target "amdgcn-amd-amdhsa--gfx950"
.text
.globl {NAME}
.p2align 8
.type {NAME},@function
{NAME}:
''' + body + f'''.section .rodata,"a"
.p2align 6
.amdhsa_kernel {NAME}
  .amdhsa_next_free_vgpr 416
  .amdhsa_next_free_sgpr 102
  .amdhsa_accum_offset 256
  .amdhsa_group_segment_fixed_size 0
  .amdhsa_kernarg_size 144
  .amdhsa_user_sgpr_count 2
  .amdhsa_user_sgpr_kernarg_segment_ptr 1
  .amdhsa_system_sgpr_workgroup_id_x 1
.end_amdhsa_kernel
'''
open(A.o, 'w').write(src)
print('max vgpr', max(r[1] for x in ins for r in (x.rd | x.wr) if r[0] == 'v'), 'starts', start)
```

```python
import re, subprocess, os

REG_RE = re.compile(r'(?<![\w.])(-|\|)?([vas])(?:(\d+)|\[(\d+):(\d+)\])(?![\w])')
TRANS = ('v_exp_f32', 'v_log_f32', 'v_rcp_f32', 'v_rsq_f32', 'v_sqrt_f32', 'v_sin_f32', 'v_cos_f32')

def regs_of(op):
    op = op.strip()
    out = set()
    if op in ('vcc',): return {('s', 'vcc')}
    if op in ('exec',): return {('s', 'exec')}
    if op in ('m0',): return {('s', 'm0')}
    if op in ('vcc_lo', 'vcc_hi'): return {('s', 'vcc')}
    m = REG_RE.search(op)
    if m:
        k = m.group(2)
        if m.group(3) is not None: out.add((k, int(m.group(3))))
        else:
            for r in range(int(m.group(4)), int(m.group(5)) + 1): out.add((k, r))
    return out

class Ins:
    def __init__(self, text, tag=None):
        self.text = text.strip(); self.tag = tag
        self.label = self.text.endswith(':')
        self.directive = self.text.startswith('.') or self.text.startswith(';') or self.text == ''
        self.size = 0
        self.rd = set(); self.wr = set()
        self.mn = ''
        if self.label or self.directive: return
        t = self.text.split(';')[0].strip()
        p = t.split(None, 1); mn = p[0]; rest = p[1] if len(p) > 1 else ''
        self.mn = mn
        base = re.sub(r'_(e32|e64|dpp|sdwa)$', '', mn)
        self.base = base
        ops = []; depth = 0; cur = ''
        for ch in rest:
            if ch in '[(': depth += 1
            if ch in '])': depth -= 1
            if ch == ',' and depth == 0: ops.append(cur.strip()); cur = ''
            else: cur += ch
        if cur.strip(): ops.append(cur.strip())
        mods = ''
        if ops:
            q = ops[-1].split(None, 1); ops[-1] = q[0]; mods = q[1] if len(q) > 1 else ''
        self.ops = ops; self.mods = mods
        R = [regs_of(o) for o in ops]
        allr = lambda xs: set().union(*xs) if xs else set()
        self.mfma = base.startswith('v_mfma')
        self.ds = base.startswith('ds_')
        self.vmem = base.startswith('buffer_') or base.startswith('global_')
        self.smem = base.startswith('s_load') or base.startswith('s_memtime') or base.startswith('s_memrealtime') or base.startswith('s_atomic')
        self.valu = base.startswith('v_') and not self.mfma
        self.salu = base.startswith('s_') and not self.smem
        self.dpp = '_dpp' in mn or 'row_' in mods or 'wave_' in mods or 'quad_perm' in mods
        self.trans = base in TRANS
        self.dot = base.startswith('v_dot')
        self.load_dst = set()
        if mn == 'PUBLISH': return
        if self.mfma:
            self.wr = R[0]; self.rd = allr(R[1:]); self.A = R[1]; self.B = R[2]; self.C = R[3]
            self.passes = 8 if '32x32' in base else 4
        elif self.ds:
            if base.startswith('ds_read') or base.startswith('ds_bpermute') or base.startswith('ds_swizzle'):
                self.wr = R[0]; self.rd = allr(R[1:]); self.load_dst = R[0]
            else: self.rd = allr(R)
        elif self.vmem:
            if '_load' in base and ' lds' not in ' ' + mods:
                self.wr = R[0]; self.rd = allr(R[1:]); self.load_dst = R[0]
                if 'd16' in base: self.rd |= R[0]
            elif '_atomic' in base and 'sc0' in mods.split():
                self.wr = R[0]; self.rd = allr(R); self.load_dst = R[0]
            else: self.rd = allr(R)
            self.wide_store = '_store' in base and ('x3' in base or 'x4' in base)
            if '_store' in base:
                self.store_data = R[0] if base.startswith('buffer_') else R[1]
        elif self.smem:
            self.wr = R[0]; self.rd = allr(R[1:]); self.load_dst = R[0]
            if base.startswith('s_atomic'): self.rd |= R[0]
        elif self.valu:
            self.wr = set(R[0]); self.rd = allr(R[1:])
            if base in ('v_add_co_u32', 'v_addc_co_u32', 'v_sub_co_u32', 'v_subb_co_u32'):
                self.wr |= R[1]; self.rd = allr(R[2:])
            if base.startswith('v_fmac') or base.startswith('v_dot2c') or base == 'v_writelane_b32' or (self.dpp and ('bank_mask:0xf' not in mods or 'row_mask:0xf' not in mods or 'bound_ctrl' not in mods)):
                self.rd |= R[0]
            if base.startswith('v_permlane') and 'swap' in base:
                self.wr |= R[1]; self.rd |= R[0]
            if base == 'v_cndmask_b32' and len(ops) == 3: self.rd.add(('s', 'vcc'))
            self.rd.add(('s', 'exec'))
        elif self.salu:
            if base.startswith('s_cmp') or base.startswith('s_cbranch') or base in ('s_branch', 's_barrier', 's_waitcnt', 's_nop', 's_sleep', 's_endpgm', 's_setprio', 's_bitcmp0_b32', 's_bitcmp1_b32'):
                self.rd = allr(R)
                if 'vcc' in base: self.rd.add(('s', 'vcc'))
                if 'exec' in base: self.rd.add(('s', 'exec'))
            else:
                self.wr = set(R[0]) if R else set(); self.rd = allr(R[1:])
                if 'saveexec' in base: self.wr.add(('s', 'exec')); self.rd.add(('s', 'exec'))
    def states(self):
        if self.label or self.directive: return 0
        if self.mn == 's_nop': return int(self.ops[0], 0) + 1
        return 1

def parse_wait(text):
    v = re.search(r'vmcnt\((\d+)\)', text); l = re.search(r'lgkmcnt\((\d+)\)', text)
    return (int(v.group(1)) if v else None, int(l.group(1)) if l else None)

def auto_wait(ins):
    out = []; vq = []; lq = []
    for x in ins:
        if x.label or x.directive: out.append(x); continue
        if x.mn == 'PUBLISH':
            last = None
            for i, e in enumerate(lq):
                if e[2]: last = i
            if last is not None:
                nl = 0 if any(e[1] for e in lq) else min(len(lq) - 1 - last, 15)
                lq = lq[len(lq) - nl:] if nl else []
                out.append(Ins(f's_waitcnt lgkmcnt({nl})', tag='auto'))
            continue
        if x.mn == 's_waitcnt':
            v, l = parse_wait(x.text)
            if v is not None: vq = vq[len(vq) - v:] if v < len(vq) else vq
            if v == 0: vq = []
            if l is not None:
                if l == 0: lq = []
                elif not any(e[1] for e in lq) and l < len(lq): lq = lq[len(lq) - l:]
            out.append(x); continue
        touch = x.rd | x.wr
        nv = None; nl = None
        for i, (d, _) in enumerate(vq):
            if d & touch: nv = len(vq) - 1 - i
        for i, (d, s, _w) in enumerate(lq):
            if d & touch: nl = len(lq) - 1 - i
        if nl is not None and any(e[1] for e in lq): nl = 0
        if nv is not None or nl is not None:
            parts = []
            if nv is not None:
                nv = min(nv, 63); parts.append(f'vmcnt({nv})'); vq = vq[len(vq) - nv:] if nv else []
            if nl is not None:
                nl = min(nl, 15); parts.append(f'lgkmcnt({nl})'); lq = lq[len(lq) - nl:] if nl else []
            out.append(Ins('s_waitcnt ' + ' '.join(parts), tag='auto'))
        if x.vmem: vq.append((x.load_dst, False))
        elif x.ds: lq.append((x.load_dst, False, not x.load_dst))
        elif x.smem: lq.append((x.load_dst, True, False))
        out.append(x)
    return out

def is_v(rs): return {r for r in rs if r[0] in 'va'}
def is_s(rs): return {r for r in rs if r[0] == 's'}

def need(p, c):
    n = 0
    pw = is_v(p.wr);
    if p.valu:
        if c.mfma and pw & c.rd: n = max(n, 2)
        if c.valu and c.dpp and pw & c.rd: n = max(n, 2)
        if c.valu and c.base in ('v_readlane_b32', 'v_readfirstlane_b32') and pw & c.rd: n = max(n, 1)
        if c.valu and c.base.startswith('v_permlane') and pw & c.rd: n = max(n, 2)
        if p.trans and pw & c.rd and not (c.valu and c.trans): n = max(n, 1)
        if p.dot and pw & (c.rd | c.wr):
            if c.valu and c.base == p.base and not (pw & (regs_of(c.ops[1]) | regs_of(c.ops[2]))): pass
            else: n = max(n, 3)
        sw = is_s(p.wr)
        if sw:
            if c.valu and sw & c.rd - {('s', 'exec')}: n = max(n, 4 if c.base in ('v_readlane_b32', 'v_writelane_b32') else 2)
            if c.vmem and sw & c.rd: n = max(n, 5)
            if (c.salu or c.smem) and sw & c.rd: n = max(n, 4)
    if p.mfma:
        big = 12 if p.passes == 8 else 8
        if c.mfma:
            if pw & (c.A | c.B): n = max(n, big)
            if pw & c.C and not (pw == c.C and c.passes == p.passes): n = max(n, big - 2)
            if pw & c.wr and pw != c.C: n = max(n, big)
        elif (c.valu or c.ds or c.vmem) and pw & (c.rd | c.wr): n = max(n, big)
        if c.valu and is_v(p.C) & c.wr: n = max(n, 7 if p.passes == 8 else 3)
    if p.vmem and getattr(p, 'wide_store', False) and p.store_data & c.wr: n = max(n, 2)
    if p.salu and ('s', 'm0') in p.wr and (c.ds or c.vmem): n = max(n, 1)
    return n

def hazards(ins):
    out = []
    for x in ins:
        if x.label or x.directive: out.append(x); continue
        req = 0; dist = 0
        for p in reversed(out):
            if p.label or p.directive: continue
            if dist >= 20: break
            n = need(p, x)
            if n - dist > req: req = n - dist
            dist += p.states()
        while req > 0:
            k = min(req, 16); out.append(Ins(f's_nop {k-1}', tag='haz')); req -= k
        out.append(x)
    return out

def sizes(ins):
    real = [x for x in ins if not (x.label or x.directive)]
    src = []
    for x in real:
        t = x.text.split(';')[0]
        if x.mn.startswith('s_cbranch') or x.mn == 's_branch': t = x.mn + ' 0'
        t = re.sub(r'\bCODE_BYTES\b', '0x12345', t)
        src.append(t)
    open('_sz.s', 'w').write('\n'.join(src) + '\n')
    r = subprocess.run(['llvm-mc', '-triple=amdgcn-amd-amdhsa', '-mcpu=gfx950', '-show-encoding', '_sz.s'], capture_output=True, text=True)
    if r.returncode != 0:
        print(r.stderr[:3000]); raise SystemExit('assembly error')
    enc = [l for l in r.stdout.splitlines() if 'encoding:' in l]
    assert len(enc) == len(real), (len(enc), len(real))
    for x, l in zip(real, enc):
        x.size = l.split('encoding:')[1].count('0x'); x.canon = l.split(';')[0].strip()

def promotable(x):
    return x.valu and x.size == 4 and x.canon.split()[0].endswith('_e32') and not x.base.startswith('v_permlane') and not x.mn.endswith('_e32')

def align8(ins):
    sizes(ins)
    out = []; addr = 0; last4 = None; mis = 0
    real = [x for x in ins if not (x.label or x.directive)]
    pos = {id(x): i for i, x in enumerate(real)}
    for x in ins:
        if x.directive or x.label:
            out.append(x); continue
        if x.size == 8 and addr % 8 == 4:
            i = pos[id(x)]; run = 0; nm = 0
            while i + run < len(real) and real[i + run].size == 8:
                nm += real[i + run].mfma; run += 1
            if last4 is not None:
                last4.text = last4.text.replace(last4.mn, last4.base + '_e64', 1); last4.mn = last4.base + '_e64'; last4.size = 8
                addr += 4; last4 = None
            elif run >= 5 and nm * 4 < run:
                n = Ins('s_nop 0', tag='align'); n.size = 4; out.append(n); addr += 4
            else: mis += 1
        if x.size == 4: last4 = x if promotable(x) else last4
        else: last4 = None
        addr += x.size; out.append(x)
    ins[:] = out
    return mis

def finalize(ins, verbose=True):
    ins = auto_wait(ins)
    ins = hazards(ins)
    mis = align8(ins)
    n = sum(1 for x in ins if not (x.label or x.directive))
    if verbose:
        print('instructions', n, 'bytes', sum(x.size for x in ins), 'haz nops', sum(1 for x in ins if x.tag == 'haz'), 'auto waits', sum(1 for x in ins if x.tag == 'auto'), 'misaligned', mis)
    return ins
def emit(ins):
    return '\n'.join((x.text if (x.label or x.directive) else '    ' + x.text) for x in ins) + '\n'

import copy
def finalize_paths(prefix, paths, verbose=True):
    outs = []; pre = None
    for p in paths:
        mark = Ins('; PATHMARK')
        full = hazards(auto_wait([copy.copy(x) for x in prefix] + [mark] + p))
        k = next(i for i, x in enumerate(full) if x is mark)
        head = full[:k]
        if pre is None: pre = head
        else: assert [x.text for x in pre] == [x.text for x in head]
        outs.append(full[k + 1:])
    cut = [next((i for i, x in enumerate(o) if x.text == '; SPLIT'), -1) for o in outs]
    if min(cut) >= 0: ins = pre + [x for o, c in zip(outs, cut) for x in o[:c]] + [x for o, c in zip(outs, cut) for x in o[c + 1:]]
    else: ins = pre + [x for o in outs for x in o]
    mis = align8(ins)
    if verbose:
        n = sum(1 for x in ins if not (x.label or x.directive))
        print('instructions', n, 'bytes', sum(x.size for x in ins), 'haz nops', sum(1 for x in ins if x.tag == 'haz'), 'auto waits', sum(1 for x in ins if x.tag == 'auto'), 'align nops', sum(1 for x in ins if x.tag == 'align'), 'misaligned', mis)
    return ins
```

```python
import sys, argparse
from asmlib import *
ap = argparse.ArgumentParser()
ap.add_argument('-o', default='gated_mix__ssm_conv_s4d__ssm_conv_s4d__prompt.s')
ap.add_argument('--diag', type=int, default=0)
ap.add_argument('--la', type=int, default=6)
ap.add_argument('--nb', type=int, default=8)
ap.add_argument('--nocodepf', type=int, default=0)
ap.add_argument('--noupf', type=int, default=0)
ap.add_argument('--prio', type=int, default=1)
ap.add_argument('--exd', type=int, default=5)
ap.add_argument('--double', type=int, default=0)
ap.add_argument('--hprio', type=int, default=0)
ap.add_argument('--late', type=int, default=0)
ap.add_argument('--slp', type=int, default=8)
ap.add_argument('--stpol', default='')
A = ap.parse_args()

NAME = 'gated_mix__ssm_conv_s4d__ssm_conv_s4d__prompt_kernel'
ROW = 2064; M0X = 63000
UB = 121856; UCH = 8320; UO = 4160
KB0 = UB + 2 * UCH; KST = 4352; LDS = KB0 + 4 * KST
assert KB0 % 256 == 0 and LDS <= 163840
WS_EP = 8192; WS_UH = 16384; WS_END = WS_UH + (2 << 20); WS_DIAG = 4 << 20
cur = None
def e(t):
    for line in t.strip().split('\n'):
        line = line.strip()
        if line: cur.append(Ins(line))
def vr(b, n): return f'v[{b}:{b+n-1}]' if n > 1 else f'v{b}'
def ar(b, n): return f'a[{b}:{b+n-1}]'
stamp_n = [0]
def stamp(dst=None):
    if not A.diag: return
    k = 64 + 2 * stamp_n[0]; stamp_n[0] += 1
    assert k < 100
    t = f's_memtime s[{k}:{k+1}]' if A.diag == 1 else f's_memrealtime s[{k}:{k+1}]'
    if dst is None: e(t)
    else: dst.append(t)

vLN = 1
vLA, vAI, vCR, vCI = 10, 11, 12, 13
sW8, sW, sCH, sTAG, sD, sLDT, sE, sCNT, sCOL, sM0 = 3, 40, 41, 48, 49, 50, 51, 54, 62, 63
sODD = 52
L2E, NL2E = '0x3fb8aa3b', '0xbfb8aa3b'

PRE = cur = []
if A.diag or A.double: e('s_memrealtime s[60:61]')
stamp()
e(f'''
s_cmp_ge_u32 s2, 256
s_cbranch_scc1 L_end
v_lshrrev_b32 v2, 6, v0
s_load_dwordx2 s[4:5], s[0:1], 0
s_load_dwordx8 s[20:27], s[0:1], 112
v_readfirstlane_b32 s{sW8}, v2
v_and_b32 v{vLN}, 63, v0
s_and_b32 s55, s2, 7
s_lshr_b32 s58, s2, 3
s_lshl_b32 s59, s55, 7
s_lshl_b32 s{sCOL}, s58, 2
s_add_u32 s{sCOL}, s{sCOL}, s59
s_and_b32 s6, s{sW8}, 1
s_mul_i32 s6, s6, 56
s_add_u32 s7, s6, 40
s_add_u32 s6, s6, 8
s_load_dwordx8 s[8:15], s[0:1], s6
s_load_dwordx4 s[16:19], s[0:1], s7
''')
if not A.nocodepf:
    e(f'''
s_getpc_b64 s[56:57]
L_pc:
s_and_b32 s6, s58, 3
s_lshl_b32 s6, s6, 12
v_lshl_add_u32 v3, v{vLN}, 6, s6
v_min_u32 v3, CODE_BYTES, v3
v_mov_b32 v5, s57
v_add_co_u32 v4, vcc, s56, v3
v_addc_co_u32 v5, vcc, 0, v5, vcc
s_cmp_lg_u32 s{sW8}, 0
s_cbranch_scc1 L_nocp
global_load_dword v9, v[4:5], off
L_nocp:
''')
e(f'''
s_and_b32 s{sW}, s{sW8}, 3
s_lshr_b32 s{sCH}, s{sW}, 1
s_lshr_b32 s6, s{sCOL}, 1
s_add_u32 s6, s6, s{sCH}
s_lshl_b32 s6, s6, 8
s_lshr_b32 s7, s{sW8}, 2
s_lshl_b32 s56, s7, 7
s_add_u32 s6, s6, s56
v_lshl_add_u32 v8, v{vLN}, 1, s6
s_lshl_b32 s{sM0}, s{sW}, 9
s_lshl_b32 s7, s7, 8
s_add_u32 s{sM0}, s{sM0}, s7
v_mov_b32 v{vLA}, 0
v_mov_b32 v{vAI}, 0
v_mov_b32 v{vCR}, 0
v_mov_b32 v{vCI}, 0
s_mov_b32 m0, s{sM0}
s_cmp_ge_u32 s{sW8}, 4
s_cbranch_scc1 L_hearly
''')
n_head_stamps = stamp_n[0]

def param_loads():
    e(f'''
global_load_short_d16_hi v{vLA}, v8, s[8:9]
global_load_short_d16_hi v{vAI}, v8, s[10:11]
global_load_short_d16_hi v{vCR}, v8, s[12:13]
global_load_short_d16_hi v{vCI}, v8, s[14:15]
''')
def srd(s, p, n): e(f's_mov_b32 s{s}, s{p}\ns_mov_b32 s{s+1}, s{p+1}\ns_mov_b32 s{s+2}, {n}\ns_mov_b32 s{s+3}, 0x20000')
def scalars(tagreg):
    e(f'''
v_mov_b32 v6, 0x3f80
ds_write_addtid_b32 v6
s_waitcnt lgkmcnt(0)
s_barrier
s_mul_i32 s{sTAG}, s{sE}, 0x9E3779B1
s_add_u32 s{sTAG}, s{sTAG}, 0x7F4A7C15
s_lshl_b32 s55, s{sCH}, 4
s_lshr_b32 s{sLDT}, s{sLDT}, s55
s_lshl_b32 s{sLDT}, s{sLDT}, 16
v_mov_b32 v{vDT}, s{sLDT}
v_mul_f32 v{vDT}, {L2E}, v{vDT}
v_exp_f32 v{vDT}, v{vDT}
''')
    for r in tagreg: e(f'v_mov_b32 v{r}, s{sTAG}')
    e(f'''
v_cvt_pk_bf16_f32 v{vDT}, v{vDT}, v{vDT}
v_and_b32 v{vDT}, 0xffff0000, v{vDT}
v_mul_f32 v{vDTL}, {NL2E}, v{vDT}
v_mul_f32 v{vDTR}, 0.15915494, v{vDT}
v_add_f32 v{vDT2}, v{vDT}, v{vDT}
''')
vDT, vDTL, vDTR, vDT2 = 14, 15, 16, 17
W1, W8, Y, X, Z, Z2, T = 18, 20, 22, 24, 26, 28, 30
PK = [32, 33, 34, 35]; E1, E8, TH1, TH8, RN = 36, 37, 38, 39, 40
XPOS = [7,6,5,4,3,2,1,0] + [256+x for x in (8,6,4,4,4,2,0,0)] + [512,516,520,520,768,772,776,776] + [1024,1032,1280,1288,1536,1544,1792,1800]
G1 = [0,1,2,3,12,13,14,15,20,21,22,23,24,25,26,27]
slot = {260: 43}
free1 = [s for s in range(32, 46) if s != 43]; free2 = list(range(46, 59))
for i in range(32):
    p = XPOS[i]
    if p not in slot: slot[p] = (free1 if i in G1 else free2).pop(0)
assert len(slot) == 27 and not free1 and not free2

def kgen_chains():
    e(f'''
v_mul_f32 v{vLA}, {L2E}, v{vLA}
v_exp_f32 v{vLA}, v{vLA}
v_mul_f32 v{vAI}, v{vAI}, v{vDTR}
v_mul_f32 v{TH8}, 0x41000000, v{vAI}
v_cvt_pk_bf16_f32 v{vLA}, v{vLA}, v{vLA}
v_rndne_f32 v{RN}, v{TH8}
v_and_b32 v{vLA}, 0xffff0000, v{vLA}
v_sub_f32 v{TH8}, v{TH8}, v{RN}
v_mul_f32 v{vLA}, v{vLA}, v{vDTL}
v_cos_f32 v{W8}, v{TH8}
v_mul_f32 v{E8}, 0x41000000, v{vLA}
v_sin_f32 v{W8+1}, v{TH8}
v_rndne_f32 v{RN}, v{vAI}
v_exp_f32 v{E8}, v{E8}
v_sub_f32 v{TH1}, v{vAI}, v{RN}
v_exp_f32 v{E1}, v{vLA}
v_mul_f32 v{W8}, v{W8}, v{E8}
v_mul_f32 v{W8+1}, v{W8+1}, v{E8}
v_cos_f32 v{W1}, v{TH1}
v_mul_f32 v{X}, v{vCR}, v{vDT2}
v_sin_f32 v{W1+1}, v{TH1}
v_mul_f32 v{X+1}, v{vCI}, v{vDT2}
v_mul_f32 v{W1}, v{W1}, v{E1}
v_mul_f32 v{W1+1}, v{W1+1}, v{E1}
''')
    c = [0]
    def cmul(R, P, Q):
        e(f'v_pk_mul_f32 {vr(T,2)}, {vr(P,2)}, {vr(Q,2)} op_sel_hi:[1,0]')
        e(f'v_pk_fma_f32 {vr(R,2)}, {vr(P,2)}, {vr(Q,2)}, {vr(T,2)} op_sel:[1,1,0] op_sel_hi:[0,1,1] neg_lo:[1,0,0]')
    def put(R, sl):
        p = PK[c[0] % 4]; c[0] += 1
        e(f'v_cvt_pk_bf16_f32 v{p}, v{R}, {"-" if sl < 32 else ""}v{R+1}')
        e(f'ds_write_addtid_b32 v{p} offset:{sl*ROW - (M0X if sl >= 32 else 0)}')
    stamp()
    put(W8, 1)
    cmul(Y, W8, W8); put(Y, 2)
    for bb in range(3, 32): cmul(Y, Y, W8); put(Y, bb)
    e(f's_add_u32 s55, s{sM0}, {M0X}\ns_mov_b32 m0, s55')
    cmul(Y, Y, W8)
    put(X, slot[0])
    cmul(Z, X, Y); put(Z, slot[256])
    for base in (256, 512, 768, 1024, 1280, 1536, 1792):
        cmul(Z2, Z, W8); put(Z2, slot[base + 8])
        if base < 1792: cmul(Z, Z, Y); put(Z, slot[base + 256])
    for r in range(1, 8):
        cmul(X, X, W1); put(X, slot[r])
        if r in (2, 4, 6):
            cmul(Z, X, Y); put(Z, slot[256 + r])
            if r == 4:
                cmul(Z, Z, Y); put(Z, slot[516])
                cmul(Z, Z, Y); put(Z, slot[772])
    stamp()
    e('PUBLISH\ns_barrier')
def finish(tag):
    if A.double:
        e(f'''s_waitcnt vmcnt(0)
s_memrealtime s[66:67]
s_waitcnt lgkmcnt(0)
s_sub_u32 s64, s66, s60
s_add_u32 s64, s64, s66
L_dbl{tag}:
s_memrealtime s[66:67]
s_waitcnt lgkmcnt(0)
s_sub_u32 s66, s66, s64
s_cmp_lt_i32 s66, 0
s_cbranch_scc1 L_dbl{tag}''')
    if A.diag:
        e('s_waitcnt vmcnt(0)'); stamp(); e('s_memrealtime s[100:101]\ns_waitcnt lgkmcnt(0)')
        e(f's_lshl_b32 s55, s2, 3\ns_add_u32 s55, s55, s{sW8}\ns_lshl_b32 s55, s55, 7\ns_add_u32 s55, s55, {WS_DIAG}\nv_mov_b32 v2, 0')
        for k in range(stamp_n[0]): e(f'v_writelane_b32 v2, s{64+2*k}, {k}')
        e(f'v_writelane_b32 v2, s60, 30\nv_writelane_b32 v2, s100, 31\nv_writelane_b32 v2, s{sCNT}, 29\nv_lshlrev_b32 v3, 2, v{vLN}\ns_lshr_b64 exec, -1, 32\nbuffer_store_dword v2, v3, s[36:39], s55 offen')
WSN = (8 << 20) if A.diag else WS_END
PH = [[0, 1, 2, 3], [4, 5, 6, 7], [8, 9, 10, 11], [12, 13], [14, 15]]

MP = cur = []
vXA, vYA, vKW, vKW2, vKW3, vAA, vBA, vEW, vDK, vGA = range(42, 52)
vGX, vGWt = 64, 72
e(f'''
v_lshrrev_b32 v2, 5, v0
v_and_b32 v3, 31, v0
v_lshlrev_b32 v3, 4, v3
s_lshl_b32 s6, s55, 18
s_lshl_b32 s7, s58, 13
s_add_u32 s6, s6, s7
v_lshl_add_u32 v2, v2, 10, s6
v_add_u32 v2, v2, v3
s_waitcnt lgkmcnt(0)
global_load_dwordx4 {vr(vGX,4)}, v2, s[4:5]
global_load_dwordx4 {vr(vGX+4,4)}, v2, s[4:5] offset:512
global_load_dwordx4 {vr(vGWt,4)}, v3, s[20:21]
global_load_dwordx4 {vr(vGWt+4,4)}, v3, s[20:21] offset:512
s_load_dword s{sE}, s[26:27], {WS_EP}
s_load_dword s{sLDT}, s[16:17], s{sCOL}
s_load_dword s{sD}, s[18:19], s{sCOL}
''')
param_loads()
e('s_branch L_mrest\n; SPLIT\nL_mrest:')
stamp()
srd(36, 26, WSN)
e(f'''
s_mov_b32 s{sCNT}, 0
s_lshl_b32 s59, s{sW}, 9
v_and_b32 v2, 31, v{vLN}
v_lshrrev_b32 v3, 5, v{vLN}
v_mul_u32_u24 v4, {ROW}, v2
v_lshl_add_u32 v5, v3, 4, s59
v_add_u32 v{vYA}, v4, v5
v_mov_b32 v6, 0
''')
for i in range(32): e(f'v_writelane_b32 v6, {slot[XPOS[i]]}, {i}')
e(f'''
v_mov_b32 v7, v6
s_mul_i32 s59, s{sW}, {KST}
s_add_u32 s59, s59, {KB0}
v_permlane32_swap_b32 v7, v6
v_mul_u32_u24 v7, {ROW}, v7
v_add_u32 v{vXA}, v7, v5
v_lshlrev_b32 v4, 4, v2
v_add_u32 v4, s59, v4
v_add_u32 v4, 224, v4
v_lshl_add_u32 v{vKW}, v3, 3, v4
v_lshl_add_u32 v{vKW2}, v3, 9, v4
v_lshl_add_u32 v{vKW3}, v3, 10, v4
v_min_u32 v4, 55, v{vLN}
v_lshl_add_u32 v4, v4, 2, s59
v_mov_b32 v5, 0
ds_write_b32 v4, v5
s_lshl_b32 s55, s{sW}, 10
v_lshl_add_u32 v{vEW}, v{vLN}, 4, s55
v_and_b32 v2, 15, v{vLN}
v_lshrrev_b32 v3, 4, v{vLN}
s_and_b32 s55, s{sW}, 1
v_add_u32 v4, 1, v2
v_lshrrev_b32 v4, 1, v4
v_lshl_add_u32 v4, v3, 2, v4
v_lshlrev_b32 v4, 2, v4
v_and_b32 v5, 1, v2
v_xor_b32 v5, 1, v5
v_mul_u32_u24 v5, {UO}, v5
s_mul_i32 s56, s{sCH}, {UCH}
s_lshl_b32 s57, s55, 7
s_add_u32 s56, s56, s57
s_add_u32 s56, s56, {UB}
v_add3_u32 v{vAA}, v4, v5, s56
v_and_b32 v4, 7, v2
v_lshrrev_b32 v5, 3, v2
v_lshlrev_b32 v6, 1, v4
v_sub_u32 v6, v6, v3
v_lshlrev_b32 v6, 4, v6
v_mul_u32_u24 v7, {KST}, v5
s_mul_i32 s56, s{sCH}, {2*KST}
s_sub_u32 s56, s56, s57
s_add_u32 s56, s56, {KB0 + 17*16 - 32 - 64}
v_add3_u32 v{vBA}, v6, v7, s56
v_and_b32 v6, 1, v{vLN}
v_cmp_eq_u32 s[{sODD}:{sODD+1}], 1, v6
s_lshr_b32 s56, s6, 8
s_lshl_b32 s57, s{sW}, 3
s_add_u32 s56, s56, s57
v_mov_b32 v{vGA}, s56
''')
scalars([9])
e(f'''
s_lshr_b32 s{sD}, s{sD}, s55
s_lshl_b32 s{sD}, s{sD}, 16
v_mov_b32 v{vDK}, 0
v_writelane_b32 v{vDK}, s{sD}, 32
''')
e(f'v_dot2_f32_bf16 v2, v{vGX}, v{vGWt}, 0')
for k in range(1, 8): e(f'v_dot2_f32_bf16 v2, v{vGX+k}, v{vGWt+k}, v2')
stamp()
for r in (8, 4, 2, 1): e(f'v_add_f32_dpp v2, v2, v2 row_ror:{r} row_mask:0xf bank_mask:0xf')
e(f'''
v_add_f32_dpp v2, v2, v2 row_bcast:15 row_mask:0xa bank_mask:0xf
v_mul_f32 v2, {NL2E}, v2
v_exp_f32 v2, v2
v_add_f32 v2, 1.0, v2
v_rcp_f32 v2, v2
v_mov_b32_dpp v3, v2 row_bcast:31 row_mask:0xc bank_mask:0xf
v_cvt_pk_bf16_f32 v8, v3, v2
s_lshl_b64 exec, 1, 63
buffer_store_dwordx2 v[8:9], v{vGA}, s[36:39], 0 offen sc1
s_mov_b64 exec, -1
''')
kgen_chains()
stamp()
if A.prio: e(f's_setprio {A.prio}')
RX = [64 + 8 * i for i in range(4)]; D = 96
def kread(ms): e(f'ds_read_b128 {vr(RX[ms%4],4)}, v{vXA} offset:{32*ms}\nds_read_b128 {vr(RX[ms%4]+4,4)}, v{vYA} offset:{32*ms}')
for ms in range(3): kread(ms)
for ms in range(16):
    if ms + 3 < 16: kread(ms + 3)
    e(f'v_mfma_f32_32x32x16_bf16 {vr(D,16)}, {vr(RX[ms%4],4)}, {vr(RX[ms%4]+4,4)}, {vr(D,16) if ms else 0}')
stamp()
P = 64
e(f'''
v_add_f32 v{D+3}, v{D+3}, v{vDK}
v_cvt_pk_bf16_f32 v{P}, v{D}, v{D+1}
v_cvt_pk_bf16_f32 v{P+1}, v{D+2}, v{D+3}
v_cvt_pk_bf16_f32 v{P+2}, v{D+4}, v{D+5}
v_cvt_pk_bf16_f32 v{P+3}, v{D+6}, v{D+7}
ds_write_b64 v{vKW}, {vr(P,2)}
ds_write_b64 v{vKW}, {vr(P+2,2)} offset:512
v_cvt_pk_bf16_f32 v{P+4}, v{D+10}, v{D+10}
v_cvt_pk_bf16_f32 v{P+5}, v{D+9}, v{D+9}
v_cvt_pk_bf16_f32 v{P+6}, v{D+9}, v{D+8}
v_cvt_pk_bf16_f32 v{P+7}, v{D+8}, v{D+8}
ds_write_b128 v{vKW2}, {vr(P+4,4)} offset:1024
''')
for ee in range(2):
    V0, V8 = D + 12 + 2 * ee, D + 13 + 2 * ee; Q = P + 8 + 4 * ee
    e(f'''
v_cndmask_b32 v2, v{V0}, v{V8}, s[{sODD}:{sODD+1}]
v_cvt_pk_bf16_f32 v{Q}, v{V8}, v{V8}
v_cvt_pk_bf16_f32 v{Q+2}, v{V0}, v{V0}
v_cvt_pk_bf16_f32 v{Q+3}, v{V0}, v{V0}
v_cvt_pk_bf16_f32 v{Q+1}, v{V8}, v2
ds_write_b128 v{vKW3}, {vr(Q,4)} offset:{2048+512*ee}
''')
e('PUBLISH\ns_barrier')
stamp()
NB = A.nb
RB = [64 + 4 * i for i in range(8)] + [12 + 4 * i for i in range(7)]
aA = lambda mu, M: 64 * mu + 4 * M
vC = lambda G, q: 96 + 16 * (G & 1) + 4 * q
mf = []; start = {}
for G, tiles in enumerate(PH):
    start[G] = len(mf); seen = set(); qm = tiles[-1]
    for mu, nu in [(0, nu) for nu in range(qm, -1, -1)] + [(1, nu) for nu in range(qm + 1)]:
        for q, Qt in enumerate(tiles):
            if Qt - nu < 0: continue
            mf.append(dict(G=G, q=q, mu=mu, nu=nu, M=Qt - nu, first=q not in seen)); seen.add(q)
N = len(mf); start[len(PH)] = N
pre = [[] for _ in range(N + 1)]
keys = []
for i, m in enumerate(mf):
    k = (m['G'], m['mu'], m['nu'])
    if not keys or keys[-1][0] != k: keys.append([k, i, i])
    keys[-1][2] = i
breg = {}
for n, (k, f, l) in enumerate(keys):
    r = RB[n % NB]; breg[k] = r
    pos = max(0, f - A.la)
    if n >= NB: pos = max(pos, keys[n - NB][2] + 1)
    pre[pos].append((f, f'ds_read_b128 {vr(r,4)}, v{vBA} offset:{256*k[2] + 64*(1-k[1])}'))
def areads(G):
    r = [f'v_add_u32 v{vAA}, 0x400, v{vAA}'] if G else []
    for mu in range(2):
        for Mq in range(4):
            M = 4 * G + Mq; o = 64 * Mq + 16 * mu
            r += [f'ds_read2_b32 {ar(aA(mu,M),2)}, v{vAA} offset0:{o} offset1:{o+1}', f'ds_read2_b32 {ar(aA(mu,M)+2,2)}, v{vAA} offset0:{o+2} offset1:{o+3}']
    return r
def exw(G, q): return f'ds_write_b128 v{vEW}, {vr(vC(G,q),4)} offset:{PH[G][q]*4096}'
load = [len(p) for p in pre]
def place(seq, at, cap=2):
    i = min(at, N)
    for t in seq:
        atomic = t if isinstance(t, list) else [t]
        while i < N and load[i] + 1 > cap: i += 1
        for u_ in atomic: pre[i].append((10**6, u_))
        load[i] += len(atomic)
    return i
last = {}
for i, m in enumerate(mf): last[(m['G'], m['q'])] = i
a0 = areads(0)
for t in a0[:4]: pre[0].append((-1, t)); load[0] += 1
i = place(a0[4:], 0, cap=4)
ia = i + 1
for G in range(len(PH) - 1):
    i = 0
    for q in range(len(PH[G])): i = max(i, place([exw(G, q)], last[(G, q)] + A.exd, cap=2))
    i = place([['PUBLISH', 's_barrier']], i + 1, cap=3)
    if G == 0: place(areads(1), ia, cap=2)
    if G == 1:
        i = place(areads(2), i + 1, cap=2); assert i < start[2] + 34, (i, start)
        i = place(areads(3), i + 1, cap=1 + 1); assert i < start[3] + 10
G = len(PH) - 1
place([exw(G, 0)], last[(G, 0)] + A.exd)
for i, m in enumerate(mf):
    for _, t in sorted(pre[i], key=lambda z: z[0]): e(t)
    if i == start[m['G']] and i: stamp()
    c = vr(vC(m['G'], m['q']), 4)
    e(f"v_mfma_f32_16x16x32_bf16 {c}, {ar(aA(m['mu'], m['M']), 4)}, {vr(breg[(m['G'], m['mu'], m['nu'])], 4)}, {0 if m['first'] else c}")
for _, t in pre[N]: e(t)
stamp()
e(exw(G, 1)); e('PUBLISH\ns_barrier')
finish('m')
e('L_end:\ns_endpgm')

HP = cur = []
stamp_n[0] = n_head_stamps
vHT, vUS, vUS2, vUL, vER, vER2, vST, vST2, vGL, vGL2, vHL, vHS, vBP, vSG, vOF = range(42, 57)
vU = 58; vHC = 64; vG = 72; vP = 92; vWt = 108
vO = 2; vPK = 6
vHI = 92; vHO = 96
sOFF = lambda j: '0' if j == 0 else f's{41+j}'
e(f'''
L_hearly:
v_add_u32 v{vHT}, 0xffffff00, v0
v_lshrrev_b32 v2, 3, v{vLN}
v_and_b32 v3, 7, v{vLN}
s_lshl_b32 s6, s58, 15
s_add_u32 s6, s6, s59
s_lshl_b32 s7, s{sW}, 5
s_add_u32 s7, s7, s6
s_add_u32 s7, s7, 0x100000
v_lshlrev_b32 v4, 11, v2
v_lshl_add_u32 v4, v3, 2, v4
v_add_u32 v4, s7, v4
v_add_u32 v5, 0x4000, v4
v_lshrrev_b32 v6, 3, v{vHT}
v_lshl_add_u32 v6, v6, 10, s6
v_lshl_add_u32 v6, v3, 4, v6
''')
e(f'''
s_waitcnt lgkmcnt(0)
global_load_dword v{vHI}, v4, s[4:5]
global_load_dword v{vHI+1}, v4, s[4:5] offset:1024
global_load_dword v{vHI+2}, v5, s[4:5]
global_load_dword v{vHI+3}, v5, s[4:5] offset:1024
{'' if A.noupf else f'global_load_dwordx4 {vr(vHC,4)}, v6, s[4:5]'}
s_load_dword s{sE}, s[26:27], {WS_EP}
s_load_dword s{sLDT}, s[16:17], s{sCOL}
''')
param_loads()
e('s_branch L_hrest\n; SPLIT\nL_hrest:')
stamp()
srd(28, 4, 0x200000); srd(32, 22, 0x200000); srd(36, 26, WSN)
for j in range(1, 7): e(f's_mov_b32 s{41+j}, {j * 262144}')
e(f'''
s_mov_b32 s{sCNT}, 0
v_lshlrev_b32 v{vBP}, 5, v3
v_lshl_add_u32 v{vBP}, v2, 2, v{vBP}
s_lshl_b32 s6, s55, 5
s_lshl_b32 s7, s{sW}, 3
s_add_u32 s7, s7, s6
s_lshl_b32 s7, s7, 13
s_lshl_b32 s56, s58, 8
s_add_u32 s7, s7, s56
s_add_u32 s7, s7, {WS_UH}
v_lshlrev_b32 v4, 13, v2
v_lshl_add_u32 v4, v3, 4, v4
v_add_u32 v{vHS}, s7, v4
s_add_u32 s6, s6, s58
s_lshl_b32 s6, s6, 13
s_add_u32 s6, s6, {WS_UH}
v_lshl_add_u32 v{vHL}, v{vHT}, 4, s6
v_lshlrev_b32 v{vUS}, 1, v{vHT}
v_add_u32 v{vUS}, {UB}, v{vUS}
v_lshlrev_b32 v{vUS2}, 2, v{vHT}
v_add_u32 v{vUS2}, {UB + 2048}, v{vUS2}
v_lshl_add_u32 v{vUL}, v{vHT}, 10, s{sCOL}
s_lshl_b32 s6, s{sW}, 12
v_lshl_add_u32 v{vER}, v{vLN}, 4, s6
s_and_b32 s57, s{sW}, 1
s_lshl_b32 s6, s{sCH}, 12
s_lshl_b32 s7, s57, 2
s_add_u32 s6, s6, s7
v_lshl_add_u32 v{vER2}, v{vLN}, 4, s6
v_and_b32 v2, 15, v{vLN}
v_lshrrev_b32 v3, 4, v{vLN}
v_and_b32 v4, 7, v2
v_lshrrev_b32 v5, 3, v2
v_lshlrev_b32 v6, 4, v4
v_lshl_add_u32 v6, v3, 2, v6
s_lshl_b32 s6, s{sW}, 9
v_lshl_add_u32 v{vGL}, v6, 2, s6
s_lshl_b32 s6, s{sCH}, 9
s_add_u32 s6, s6, 6144
v_lshl_add_u32 v{vGL2}, v6, 2, s6
v_lshl_add_u32 v6, v5, 1, v6
s_lshl_b32 s6, s{sW}, 17
s_add_u32 s6, s6, s{sCOL}
v_lshl_add_u32 v{vST}, v6, 10, s6
s_lshl_b32 s6, s{sCH}, 17
s_lshl_b32 s7, s57, 10
s_add_u32 s6, s6, s7
s_add_u32 s6, s6, s{sCOL}
v_lshl_add_u32 v{vST2}, v6, 10, s6
v_cvt_f32_u32 v{vOF}, v5
v_fma_f32 v{vSG}, v{vOF}, -2.0, 1.0
s_xor_b32 s57, s57, 1
s_lshl_b32 s57, s57, 4
s_mov_b32 s53, 4096
s_mov_b32 s52, {14*131072}
s_cmp_lg_u32 s{sW}, 0
s_cbranch_scc1 L_nozero
v_lshrrev_b32 v6, 3, v{vLN}
v_and_b32 v6, 3, v6
v_mul_u32_u24 v6, {UO}, v6
v_and_b32 v7, 7, v{vLN}
v_lshl_add_u32 v6, v7, 2, v6
v_add_u32 v6, {UB}, v6
v_mov_b32 v7, 0
ds_write_b32 v6, v7
L_nozero:
''')
scalars([vHO + 1, vHO + 3, vHO + 5, vHO + 7])
for k in range(4): e(f'ds_bpermute_b32 v{vHO+2*k}, v{vBP}, v{vHI+k}')
stamp()
e(f'''
buffer_store_dwordx4 {vr(vHO,4)}, v{vHS}, s[36:39], 0 offen sc1
buffer_store_dwordx4 {vr(vHO+4,4)}, v{vHS}, s[36:39], 0 offen offset:128 sc1
s_waitcnt vmcnt(6)
''')
stamp()
for j in range(4): e(f'buffer_load_dword v{vU+j}, v{vUL}, s[28:31], {sOFF(j)} offen')
kgen_chains()
stamp()
def uload(): return [f'buffer_load_dwordx4 {vr(vHC,4)}, v{vHL}, s[36:39], 0 offen sc1', f'buffer_load_dwordx4 {vr(vHC+4,4)}, v{vHL}, s[36:39], s53 offen sc1']
def gload(G):
    return [[f'buffer_load_dwordx4 {vr(vG,4)}, v{vGL}, s[36:39], 0 offen sc1', f'buffer_load_dwordx4 {vr(vG+4,4)}, v{vGL}, s[36:39], 0 offen offset:2048 sc1',
            f'buffer_load_dwordx4 {vr(vG+8,4)}, v{vGL}, s[36:39], s53 offen sc1',
            f'buffer_load_dwordx4 {vr(vG+12,4)}, v{vGL2}, s[36:39], 0 offen sc1', f'buffer_load_dwordx4 {vr(vG+16,4)}, v{vGL2}, s[36:39], 0 offen offset:1024 sc1'][G]]
SLOW = []
def check(name, tags, reload):
    e(f'v_xor_b32 v10, s{sTAG}, v{tags[0]}')
    e(f'L_chk{name}:')
    tmp = list(range(10, 10 + len(tags)))
    for t, r in list(zip(tags, tmp))[1:]: e(f'v_xor_b32 v{r}, s{sTAG}, v{t}')
    while len(tmp) > 2:
        e(f'v_or3_b32 v{tmp[0]}, v{tmp[0]}, v{tmp[1]}, v{tmp[2]}'); tmp = tmp[3:] + [tmp[0]]
    e(f'v_or_b32 v{tmp[0]}, v{tmp[0]}, v{tmp[1]}\nv_cmp_ne_u32 vcc, 0, v{tmp[0]}\ns_cbranch_vccnz L_slow{name}\nL_ok{name}:')
    SLOW.append(f"""
L_slow{name}:
s_add_u32 s{sCNT}, s{sCNT}, 1
s_cmp_gt_u32 s{sCNT}, 20000
s_cbranch_scc1 L_ok{name}
s_sleep {A.slp}
""" + '\n'.join(reload) + f"""
s_waitcnt vmcnt(0)
v_xor_b32 v10, s{sTAG}, v{tags[0]}
s_branch L_chk{name}
""")
def gcheck(G): check(f'g{G}', [vG + 4 * G + 3, vG + 4 * G + 1], gload(G))
def stage(addr, reg, o):
    e(f'''ds_write_b16 v{addr}, v{reg} offset:{o+32}
ds_write_b16 v{addr}, v{reg} offset:{o+30+UO}
ds_write_b16_d16_hi v{addr}, v{reg} offset:{o+32+UCH}
ds_write_b16_d16_hi v{addr}, v{reg} offset:{o+30+UO+UCH}''')
def exr(G):
    for w in range(4): e(f'ds_read_b128 {vr(vP+4*w,4)}, v{vER} offset:{16384*G + 1024*w}')
def exr2(G):
    base = PH[G][0] * 4096
    for ww in range(4):
        for r in range(2): e(f'ds_read_b32 v{vP+2*ww+r}, v{vER2} offset:{base + 1024*ww + 8*r}')
def weights(G):
    g = vG + 4 * G; w = vWt
    if G < 3:
        e(f'v_lshlrev_b32 v{w}, 16, v{g}\nv_and_b32 v{w+1}, 0xffff0000, v{g}\nv_lshlrev_b32 v{w+2}, 16, v{g+2}\nv_and_b32 v{w+3}, 0xffff0000, v{g+2}')
        for k in range(4): e(f'v_fma_f32 v{w+k}, v{w+k}, v{vSG}, v{vOF}')
    else:
        for k in range(2): e(f'v_lshlrev_b32 v{w+k}, s57, v{g+2*k}')
        for k in range(2): e(f'v_and_b32 v{w+k}, 0xffff0000, v{w+k}')
        for k in range(2): e(f'v_fma_f32 v{w+k}, v{w+k}, v{vSG}, v{vOF}')
def mix(G):
    w = vWt
    for k in range(2):
        for c in range(2):
            for r in (k, k + 2): e(f'v_add_f32 v{vP+8*c+r}, v{vP+8*c+r}, v{vP+8*c+4+r}')
        for c in range(2):
            for r in (k, k + 2): e(f'v_mul_f32 v{vP+8*c+r}, v{vP+8*c+r}, v{w+r}')
        for c in range(2): e(f'v_add_f32_dpp v{vO+2*k+c}, v{vP+8*c+k}, v{vP+8*c+k} row_ror:8 row_mask:0xf bank_mask:0x3')
        for c in range(2): e(f'v_add_f32_dpp v{vO+2*k+c}, v{vP+8*c+2+k}, v{vP+8*c+2+k} row_ror:8 row_mask:0xf bank_mask:0xc')
        e(f'v_cvt_pk_bf16_f32 v{vPK+k}, v{vO+2*k}, v{vO+2*k+1}')
        e(f'buffer_store_dword v{vPK+k}, v{vST}, s[32:35], {sOFF(2*G)} offen' + (' offset:1024' if k else '') + ' ' + A.stpol)
def mix2(G):
    w = vWt
    for c in range(2):
        for r in range(2): e(f'v_add_f32 v{vP+4*c+r}, v{vP+4*c+r}, v{vP+4*c+2+r}')
    for c in range(2):
        for r in range(2): e(f'v_mul_f32 v{vP+4*c+r}, v{vP+4*c+r}, v{w+r}')
    for c in range(2): e(f'v_add_f32_dpp v{vO+c}, v{vP+4*c}, v{vP+4*c} row_ror:8 row_mask:0xf bank_mask:0x3')
    for c in range(2): e(f'v_add_f32_dpp v{vO+c}, v{vP+4*c+1}, v{vP+4*c+1} row_ror:8 row_mask:0xf bank_mask:0xc')
    e(f'v_cvt_pk_bf16_f32 v{vPK+G-1}, v{vO}, v{vO+1}')
    e(f'buffer_store_dword v{vPK+G-1}, v{vST2}, s[32:35], {"s47" if G == 3 else "s52"} offen ' + A.stpol)
if A.hprio: e(f's_setprio {A.hprio}')
for t in gload(0): e(t)
for j in range(4): stage(vUS, vU + j, 512 * j)
stamp()
e('PUBLISH\ns_barrier')
stamp()
gcheck(0); weights(0)
for t in uload() + gload(1): e(t)
e('s_barrier')
stamp()
exr(0); mix(0)
stamp()
check('u', [vHC + 7, vHC + 1, vHC + 3, vHC + 5], uload())
for c in range(2):
    for k in range(2): stage(vUS2, vHC + 4 * c + 2 * k, 1024 * c + 2 * k)
gcheck(1); weights(1)
for t in gload(2): e(t)
stamp()
e('PUBLISH\ns_barrier')
exr(1); mix(1)
stamp()
gcheck(2); weights(2)
for t in gload(3) + gload(4): e(t)
e('s_barrier')
exr(2); mix(2)
stamp()
gcheck(3); weights(3)
e('s_barrier')
exr2(3); mix2(3)
stamp()
gcheck(4); weights(4)
e('s_barrier')
exr2(4); mix2(4)
stamp()
e(f'''
s_or_b32 s55, s2, s{sW}
s_cmp_lg_u32 s55, 0
s_cbranch_scc1 L_noep
v_mov_b32 v2, s{sTAG}
v_mov_b32 v3, {WS_EP}
s_mov_b64 exec, 1
buffer_store_dword v2, v3, s[36:39], 0 offen sc1
s_mov_b64 exec, -1
L_noep:
''')
finish('h')
e('s_endpgm')
for t in SLOW: e(t)
e('L_codeend:')

ins = finalize_paths(PRE, [MP, HP])
body = emit(ins).replace('CODE_BYTES', 'L_codeend-L_pc-4')
ref = open('gated_mix__ssm_conv_s4d__ssm_conv_s4d__prompt.s.ref').read()
head = ref[:ref.index('; Override launch geometry')]
src = head + f'''; @launch grid=(256,1,1) block=(512,1,1) lds={LDS}
.amdgcn_target "amdgcn-amd-amdhsa--gfx950"
.text
.globl {NAME}
.p2align 8
.type {NAME},@function
{NAME}:
''' + body + f'''.section .rodata,"a"
.p2align 6
.amdhsa_kernel {NAME}
  .amdhsa_next_free_vgpr 256
  .amdhsa_next_free_sgpr 102
  .amdhsa_accum_offset 128
  .amdhsa_group_segment_fixed_size 0
  .amdhsa_kernarg_size 144
  .amdhsa_user_sgpr_count 2
  .amdhsa_user_sgpr_kernarg_segment_ptr 1
  .amdhsa_system_sgpr_workgroup_id_x 1
.end_amdhsa_kernel
'''
open(A.o, 'w').write(src)
mv = max(r[1] for x in ins for r in (x.rd | x.wr) if r[0] == 'v'); assert mv < 128
print('max vgpr', mv, 'starts', start)
```
